```python
import torch

def _softmax(x, axis=-1):
    return torch.softmax(x, dim=axis)
def _gelu(x):
    return torch.nn.functional.gelu(x, approximate="tanh")
def _silu(x):
    return torch.nn.functional.silu(x)
def _sigmoid(x):
    return torch.sigmoid(x)
def _layernorm(x, axis=-1, eps=1e-5):
    m = x.mean(dim=axis, keepdim=True)
    v = x.var(dim=axis, keepdim=True, unbiased=False)
    return (x - m) / torch.sqrt(v + eps)
def _scatter_add(tgt, idx, src, axis=0):
    return tgt.clone().index_add_(axis, idx, src)
def _segment_sum(src, seg, n):
    out = torch.zeros((n,) + src.shape[1:], dtype=src.dtype)
    return out.index_add_(0, seg, src)
def _pad(x, pw):
    flat = tuple(v for pair in reversed(pw) for v in pair)
    return torch.nn.functional.pad(x, flat)

kernel_name = 'interleave_layers__grouped_kv_mqa__dense_activation_gelu__prompt'

def setup_inputs():

    _w = (lambda a: (lambda t: t.to(torch.bfloat16) if t.is_floating_point() else t)(torch.as_tensor(a)))
    def _A_setup():
        B, S, D, H = 1, 2048, 512, 32
        Dh = D // H
        return {
            "x": _w((lambda *s: torch.randn(*s, dtype=torch.bfloat16) * 0.05)(B, S, D)),
            "wq": _w((lambda *s: torch.randn(*s, dtype=torch.bfloat16) * 0.05)(D, H * Dh)),
            "wk": _w((lambda *s: torch.randn(*s, dtype=torch.bfloat16) * 0.05)(D, Dh)),
            "wv": _w((lambda *s: torch.randn(*s, dtype=torch.bfloat16) * 0.05)(D, Dh)),
            "wo": _w((lambda *s: torch.randn(*s, dtype=torch.bfloat16) * 0.05)(H * Dh, D)),
        }
    _A_in = _A_setup()

    def _B_setup():
        B, S, D, F = 1, 2048, 512, 1376
        return {
            "x": _w((lambda *s: torch.randn(*s, dtype=torch.bfloat16) * 0.05)(B, S, D)),
            "w1": _w((lambda *s: torch.randn(*s, dtype=torch.bfloat16) * 0.8)(D, F) * (D ** -0.5)),
            "b1": _w((lambda *s: torch.randn(*s, dtype=torch.bfloat16) * 12.8)(F) * 0.01),
            "w2": _w((lambda *s: torch.randn(*s, dtype=torch.bfloat16) * 0.2)(F, D) * (F ** -0.5)),
            "b2": _w((lambda *s: torch.randn(*s, dtype=torch.bfloat16) * 1.6)(D) * 0.01),
        }
    _B_in = _B_setup()

    return {
        "A_x": _A_in["x"],
        "A_wq": _A_in["wq"],
        "A_wk": _A_in["wk"],
        "A_wv": _A_in["wv"],
        "A_wo": _A_in["wo"],
        "B_x": _B_in["x"],
        "B_w1": _B_in["w1"],
        "B_b1": _B_in["b1"],
        "B_w2": _B_in["w2"],
        "B_b2": _B_in["b2"],
    }

def reference(A_x, A_wq, A_wk, A_wv, A_wo, B_x, B_w1, B_b1, B_w2, B_b2):
    def _A_ref(x, wq, wk, wv, wo):
        B, S, D = x.shape
        H = 32
        Dh = D // H
        q = (lambda x, *d: x.permute(*d))((x @ wq).reshape(B, S, H, Dh), 0, 2, 1, 3)
        k = x @ wk
        v = x @ wv
        scores = torch.einsum("bhqd,bkd->bhqk", q, k) * (Dh ** -0.5)
        p = _softmax(scores, axis=-1)
        o = torch.einsum("bhqk,bkd->bhqd", p, v)
        return (lambda x, *d: x.permute(*d))(o, 0, 2, 1, 3).reshape(B, S, H * Dh) @ wo

    def _B_ref(x, w1, b1, w2, b2):
        h = torch.einsum("bsd,df->bsf", x, w1) + b1
        h = _gelu(h)
        return torch.einsum("bsf,fd->bsd", h, w2) + b2

    x = A_x
    x = x + _A_ref(_layernorm(x, axis=-1), A_wq, A_wk, A_wv, A_wo)
    x = x + _B_ref(_layernorm(x, axis=-1), B_w1, B_b1, B_w2, B_b2)
    x = x + _A_ref(_layernorm(x, axis=-1), A_wq, A_wk, A_wv, A_wo)
    x = x + _B_ref(_layernorm(x, axis=-1), B_w1, B_b1, B_w2, B_b2)
    return x
```

```python
from gen_common import *
THR = 60.0

PSW = int(os.environ.get('PSW', 2))
PF_END = int(os.environ.get('PF_END', WQ_P))
def gen_attn():
    k = K("attn_kernel", 256, 512, 8*3*2304, 176)
    n = k.name
    Q, O, S, P, KV, M = 16, 32, 96, 128, 136, 160
    def Kb(b): return KV + 12*b
    def Vb(b, h): return KV + 12*b + 4 + 4*h
    k(f"""
    s_cmp_ge_u32 s2, 256
    s_cbranch_scc1 {n}_end
    s_load_dwordx2 s[20:21], s[0:1], {A_WS}
    v_lshrrev_b32 v2, 6, v0
    v_and_b32 v3, 63, v0
    v_readfirstlane_b32 s3, v2                  ; wave
    v_lshlrev_b32 v1, 4, v3                     ; lane*16
    v_lshlrev_b32 v2, 2, v3                     ; lane*4
    s_and_b32 s16, s2, 7
    s_lshl_b32 s16, s16, 3
    s_bfe_u32 s17, s2, 0x30003
    s_add_u32 s16, s16, s17                     ; tb
    s_lshr_b32 s17, s2, 6
    s_and_b32 s18, s3, 1                        ; g
    s_lshr_b32 s19, s3, 1                       ; kq
    s_lshl_b32 s22, s16, 5
    s_lshl_b32 s17, s17, 3
    s_add_u32 s22, s22, s17
    s_lshl_b32 s17, s18, 2
    s_add_u32 s22, s22, s17
    s_waitcnt lgkmcnt(0)
    """)
    k.stamp(0)
    if PSW:
        k(f"s_setprio 1\ns_cmp_lt_u32 s3, 4\ns_cbranch_scc1 {n}_p\ns_setprio 2\n{n}_p:")
    k.srd(4, 20, WS_END)
    k.srd(8, 20, PF_END)
    k(f"s_lshr_b32 s42, s2, 3\ns_lshl_b32 s42, s42, 3\ns_add_u32 s42, s42, s3\ns_lshl_b32 s42, s42, 10\ns_add_u32 s42, s42, {WO_P}")
    for b in range(4):
        k(f"s_xor_b32 s23, s19, {b}\ns_add_u32 s23, s23, s22\ns_lshl_b32 s23, s23, 10\ns_add_u32 s{24+b}, s23, {QP}")
        k(f"buffer_load_dwordx4 {vr(Q+4*b)}, v1, s[4:7], s{24+b} offen")
    k(f"""
    s_mov_b32 s28, {KMAX}
    buffer_load_dwordx4 v[12:15], v1, s[4:7], s28 offen
    s_lshl_b32 s40, s19, 14
    s_add_u32 s40, s40, {KP}
    s_lshl_b32 s41, s19, 15
    s_add_u32 s41, s41, {VP}
    buffer_load_dwordx4 {vr(Kb(0))}, v1, s[4:7], s40 offen
    buffer_load_dwordx4 {vr(Vb(0,0))}, v1, s[4:7], s41 offen
    buffer_load_dwordx4 {vr(Vb(0,1))}, v1, s[4:7], s41 offen offset:1024
    s_add_u32 s40, s40, 1024
    s_add_u32 s41, s41, 2048
    """)
    for i in range(64):
        k(f"v_mov_b32 v{O+i}, 0")
    for i in range(4):
        k(f"v_mov_b32 v{P+4+i}, 0\nv_mov_b32 v{Vb(1,1)+i}, 0\nv_mov_b32 v{8+i}, 0")
    k("s_waitcnt vmcnt(3)\nv_add_f32 v6, v12, v13\nv_add_f32 v7, v14, v15\nv_add_f32 v6, v6, v7")
    for b in range(4):
        for r in range(4):
            k(f"v_dot2c_f32_bf16 v{8+b}, v{Q+4*b+r}, v{Q+4*b+r}")
    k(f"""
    v_max_f32_dpp v6, v6, v6 quad_perm:[1,0,3,2] row_mask:0xf bank_mask:0xf
    s_nop 2
    v_max_f32_dpp v6, v6, v6 quad_perm:[2,3,0,1] row_mask:0xf bank_mask:0xf
    v_permlane32_swap_b32 v8, v9
    v_permlane32_swap_b32 v10, v11
    v_max_f32_dpp v6, v6, v6 row_half_mirror row_mask:0xf bank_mask:0xf
    v_add_f32 v8, v8, v9
    v_add_f32 v10, v10, v11
    v_max_f32_dpp v6, v6, v6 row_mirror row_mask:0xf bank_mask:0xf
    v_max_f32 v8, v8, v10
    s_nop 0
    v_readlane_b32 s30, v6, 0
    v_readlane_b32 s31, v6, 16
    v_readlane_b32 s32, v6, 32
    v_readlane_b32 s33, v6, 48
    s_max_u32 s30, s30, s31
    s_max_u32 s32, s32, s33
    s_max_u32 s30, s30, s32
    v_mul_f32 v8, s30, v8
    s_mov_b32 s31, {hex(f2u(THR*THR))}
    v_cmp_nge_f32 vcc, s31, v8
    s_mov_b32 s34, 8
    s_cmp_ge_u32 s3, 4
    s_cselect_b32 s37, {PSW}, -1
    s_nop 1
    s_cbranch_vccnz {n}_slow
    """)
    def main_loop(slow):
        L = k.lab("loop")
        for i in range(4): k(f"v_mov_b32 v{S+28+i}, 0")
        k(f"s_waitcnt vmcnt(0)\n{MFMA} {vr(S,16)}, {vr(Kb(0))}, {vr(Q)}, 0\ns_nop 15\n.p2align 6\n{L}:")
        for B in range(2):
            for t in range(4):
                Sc, Sn = S + 16*(t & 1), S + 16*((t+1) & 1)
                tn, Bn = (t+1) & 3, (B ^ 1 if t == 3 else B)
                tp, Bp = (t-1) & 3, (B ^ 1 if t == 0 else B)
                def e(i):
                    if slow:
                        k(f"v_sub_f32 v{Sc+i}, v{Sc+i}, v{M+t}")
                    k(f"v_exp_f32 v{Sc+i}, v{Sc+i}")
                def c(p): k(f"v_cvt_pk_bf16_f32 v{P+p}, v{Sc+2*p}, v{Sc+2*p+1}")
                def cp(p): k(f"v_cvt_pk_bf16_f32 v{P+p}, v{Sn+2*p}, v{Sn+2*p+1}")
                e(0); e(1); cp(6); e(2); cp(7)
                if t == 3:
                    k("s_waitcnt vmcnt(1)")
                k(f"{MFMA} {vr(Sn,16)}, {vr(Kb(Bn))}, {vr(Q+4*tn)}, 0")
                e(3); e(4); c(0)
                k(f"{MFMA} {vr(O+16*tp,16)}, {vr(Vb(Bp,1))}, {vr(P+4)}, {vr(O+16*tp,16)}")
                if t == 0:
                    k(f"""
                    buffer_load_dwordx4 {vr(Kb(B^1))}, v1, s[4:7], s40 offen offset:{1024*B}
                    buffer_load_dwordx4 {vr(Vb(B^1,0))}, v1, s[4:7], s41 offen offset:{2048*B}
                    buffer_load_dwordx4 {vr(Vb(B^1,1))}, v1, s[4:7], s41 offen offset:{2048*B+1024}
                    buffer_load_dwordx4 {vr(164)}, v1, s[8:11], s42 offen
                    s_add_u32 s42, s42, 0x40000
                    """)
                e(5); e(6); c(1); e(7); e(8); c(2); e(9); e(10); c(3); e(11); e(12)
                k(f"{MFMA} {vr(O+16*t,16)}, {vr(Vb(B,0))}, {vr(P)}, {vr(O+16*t,16)}")
                c(4); e(13); e(14); c(5); e(15)
        k(f"""
        s_add_u32 s40, s40, 2048
        s_add_u32 s41, s41, 4096
        s_sub_u32 s34, s34, 1
        s_cmp_lg_u32 s34, s37
        s_cbranch_scc1 {L}x
        s_setprio 0
        {L}x:
        s_cmp_lg_u32 s34, 0
        s_cbranch_scc1 {L}
        v_cvt_pk_bf16_f32 v{P+6}, v{S+28}, v{S+29}
        v_cvt_pk_bf16_f32 v{P+7}, v{S+30}, v{S+31}
        s_nop 1
        {MFMA} {vr(O+48,16)}, {vr(Vb(1,1))}, {vr(P+4)}, {vr(O+48,16)}
        """)
    k.stamp(1)
    main_loop(False)
    k.stamp(2)
    k(f"{n}_fin:\ns_lshl_b32 s18, s18, 2\ns_nop 15")
    for b in (1, 2, 3):
        k(f"""
        s_xor_b32 s30, s19, {b}
        s_add_u32 s30, s30, s18
        s_mul_i32 s30, s30, 6912
        v_add_u32 v6, s30, v1
        v_add_u32 v7, s30, v2
        ds_write_b128 v6, {vr(O+16*b)} offset:{(b-1)*2304}
        ds_write_b128 v6, {vr(O+16*b+4)} offset:{(b-1)*2304+1024}
        ds_write_b32 v7, v{O+16*b+8} offset:{(b-1)*2304+2048}
        """)
    k(f"""
    s_add_u32 s30, s19, s18
    s_mul_i32 s30, s30, 6912
    v_add_u32 v6, s30, v1
    v_add_u32 v7, s30, v2
    s_waitcnt lgkmcnt(0)
    s_barrier
    """)
    k.stamp(3)
    for s in range(3):
        k(f"""
        ds_read_b128 {vr(O+16+16*s)}, v6 offset:{s*2304}
        ds_read_b128 {vr(O+20+16*s)}, v6 offset:{s*2304+1024}
        ds_read_b32 v{O+24+16*s}, v7 offset:{s*2304+2048}
        """)
    for s in range(3):
        k(f"s_waitcnt lgkmcnt({6-3*s})")
        for i in (8, 0, 1, 2, 3, 4, 5, 6, 7):
            k(f"v_add_f32 v{O+i}, v{O+i}, v{O+16+16*s+i}")
    k(f"v_rcp_f32 v{O+8}, v{O+8}\ns_add_u32 s24, s24, {OP-QP}\ns_nop 0")
    for i in range(8):
        k(f"v_mul_f32 v{O+i}, v{O+i}, v{O+8}")
    for p in range(4):
        k(f"v_cvt_pk_bf16_f32 v{P+p}, v{O+2*p}, v{O+2*p+1}")
    k(f"""
    buffer_store_dwordx4 {vr(P)}, v1, s[4:7], s24 offen
    {n}_end:
    s_endpgm
    {n}_slow:
    s_mov_b32 s35, {KP}
    s_mov_b32 s36, 64
    """)
    for t in range(4):
        k(f"v_mov_b32 v{M+t}, 0xff800000")
    L = k.lab("mx")
    k(f"{L}:\nbuffer_load_dwordx4 {vr(Kb(1))}, v1, s[4:7], s35 offen\ns_waitcnt vmcnt(0)")
    for h in range(2):
        for t in range(2):
            k(f"{MFMA} {vr(S+16*t,16)}, {vr(Kb(1))}, {vr(Q+8*h+4*t)}, 0")
        k("s_nop 15\ns_nop 3")
        for t in range(2):
            for i in range(8):
                k(f"v_max3_f32 v{M+2*h+t}, v{M+2*h+t}, v{S+16*t+2*i}, v{S+16*t+2*i+1}")
    k(f"""
    s_add_u32 s35, s35, 1024
    s_sub_u32 s36, s36, 1
    s_cmp_lg_u32 s36, 0
    s_cbranch_scc1 {L}
    """)
    for t in range(4):
        k(f"v_mov_b32 v{8+t}, v{M+t}")
    k("s_nop 1")
    for t in range(4):
        k(f"v_permlane32_swap_b32 v{8+t}, v{M+t}")
    k("s_nop 1")
    for t in range(4):
        k(f"v_max_f32 v{M+t}, v{M+t}, v{8+t}")
    main_loop(True)
    k(f"s_branch {n}_fin")
    return k
```

```python
NAME = "interleave_layers__grouped_kv_mqa__dense_activation_gelu__prompt"
KB1 = 1024
WO_P  = 0
W1_P  = WO_P + 512*KB1
WX    = W1_P + 1376*KB1
WQ_P  = WX + 64*KB1
WKV_P = WQ_P + 512*KB1
W2_P  = WKV_P + 32*KB1
KMAX  = W2_P + 1376*KB1
X0P   = KMAX + 8*KB1
X1P   = X0P + 2048*KB1
STA   = X1P + 2048*KB1
STB   = STA + 256*KB1
QP    = STB + 256*KB1
KP    = QP + 2048*KB1
VP    = KP + 64*KB1
OP    = VP + 128*KB1
HP    = OP + 2048*KB1
WS_END = HP + 64*86*KB1
A_X, A_WQ, A_WK, A_WV, A_WO, A_BX, A_W1, A_B1, A_W2, A_B2, A_OUT, A_DBG, A_WS = [8*i for i in range(13)]

import struct, os
def f2u(f):
    return struct.unpack("<I", struct.pack("<f", f))[0]

class K:
    def __init__(self, name, grid, block, lds, vgpr, sgpr=96):
        self.name, self.grid, self.block, self.lds, self.vgpr, self.sgpr = name, grid, block, lds, vgpr, sgpr
        self.L = []
        self.nlab = 0
    def __call__(self, s):
        for line in s.split("\n"):
            line = line.strip()
            if line:
                self.L.append(("" if line.endswith(":") else "    ") + line)
    def stamp(self, i):
        if os.environ.get("PROF"):
            self(f"s_memtime s[80:81]\ns_waitcnt lgkmcnt(0)\ns_sub_u32 s{64+i}, s80, s94")
    def lab(self, base="L"):
        self.nlab += 1
        return f"{self.name}_{base}{self.nlab}"
    def srd(self, d, ptr, nbytes):
        self(f"s_mov_b32 s{d}, s{ptr}\ns_mov_b32 s{d+1}, s{ptr+1}\ns_mov_b32 s{d+2}, {nbytes}\ns_mov_b32 s{d+3}, 0x20000")
    def text(self):
        if os.environ.get("PROF"):
            K.idx = getattr(K, "idx", -1) + 1
            self.sgpr = 102
            pre = [f"s_load_dwordx2 s[88:89], s[0:1], {A_WS}", "s_memrealtime s[92:93]", "s_memtime s[94:95]",
                   "v_readfirstlane_b32 s86, v0", "s_lshr_b32 s86, s86, 6", "s_lshl_b32 s87, s2, 3", "s_add_u32 s87, s87, s86",
                   "s_lshl_b32 s87, s87, 6", f"s_add_u32 s87, s87, {(56<<20) + K.idx*262144}", "s_waitcnt lgkmcnt(0)"] + [f"s_mov_b32 s{64+i}, 0" for i in range(8)]
            post = ["s_waitcnt vmcnt(0)", "s_memrealtime s[96:97]", "s_memtime s[98:99]", "s_mov_b64 exec, -1", "s_waitcnt lgkmcnt(0)", "s_sub_u32 s98, s98, s94",
                    "v_mov_b32 v4, s92", "v_mov_b32 v5, s96", "v_mov_b32 v6, s98", "v_mov_b32 v7, 0x1234", "v_mov_b32 v8, s87",
                    "global_store_dwordx4 v8, v[4:7], s[88:89]"] + [f"v_mov_b32 v{12+i}, s{64+i}" for i in range(8)] + ["global_store_dwordx4 v8, v[12:15], s[88:89] offset:16", "global_store_dwordx4 v8, v[16:19], s[88:89] offset:32", "s_endpgm"]
            L = pre
            for l in self.L:
                L += post if l.strip() == "s_endpgm" else [l]
            self.L = L
        return (f".globl {self.name}\n.p2align 8\n.type {self.name},@function\n{self.name}:\n" + "\n".join(self.L) + "\n")
    def desc(self):
        acc = (self.vgpr + 3)//4*4
        self.vgpr = acc + getattr(self, 'agpr', 0)
        return f""".p2align 6
.amdhsa_kernel {self.name}
  .amdhsa_next_free_vgpr {self.vgpr}
  .amdhsa_next_free_sgpr {self.sgpr}
  .amdhsa_accum_offset {acc}
  .amdhsa_group_segment_fixed_size 0
  .amdhsa_kernarg_size 104
  .amdhsa_user_sgpr_count 2
  .amdhsa_user_sgpr_kernarg_segment_ptr 1
  .amdhsa_system_sgpr_workgroup_id_x 1
.end_amdhsa_kernel
"""
def vr(a, n=4):
    return f"v[{a}:{a+n-1}]"
def sr(a, n=4):
    return f"s[{a}:{a+n-1}]"

def assemble(kernels, launches, header=""):
    out = header
    for k in launches:
        out += f"; @launch kernel={k.name} grid=({k.grid},1,1) block=({k.block},1,1) lds={k.lds}\n"
    out += '.amdgcn_target "amdgcn-amd-amdhsa--gfx950"\n.text\n'
    for k in kernels:
        out += k.text()
    out += '.section .rodata,"a"\n'
    for k in kernels:
        out += k.desc()
    return out

def emit_stats(k, b, mean, rstd, t0, t1):
    for st in (8, 4, 2):
        for r in range(st):
            k(f"v_add_f32 v{b+r}, v{b+r}, v{b+r+st}")
    k(f"""
    s_nop 1
    v_permlane32_swap_b32 v{b}, v{b+1}
    s_nop 1
    v_add_f32 v{t0}, v{b}, v{b+1}
    v_add_f32 v{t1}, v{b}, v{b+1}
    s_nop 1
    v_permlane32_swap_b32 v{t0}, v{t1}
    s_nop 1
    v_mul_f32 v{mean}, {hex(f2u(1/512))}, v{t0}
    v_mul_f32 v{t1}, {hex(f2u(1/512))}, v{t1}
    v_fma_f32 v{t1}, -v{mean}, v{mean}, v{t1}
    v_max_f32 v{t1}, 0, v{t1}
    v_add_f32 v{t1}, {hex(f2u(1e-5))}, v{t1}
    v_rsq_f32 v{rstd}, v{t1}
    s_nop 0
    """)

def emit_stats_out(k, a, t0, t1, voff, soff):
    k(f"v_add_f32 v{t0}, v{a}, v{a+1}\nv_mul_f32 v{t1}, v{a}, v{a}\nv_fma_f32 v{t1}, v{a+1}, v{a+1}, v{t1}")
    for i in range(2, 16):
        k(f"v_add_f32 v{t0}, v{t0}, v{a+i}\nv_fma_f32 v{t1}, v{a+i}, v{a+i}, v{t1}")
    k(f"""
    s_nop 1
    v_permlane32_swap_b32 v{t0}, v{t1}
    s_nop 1
    v_add_f32 v{t0}, v{t0}, v{t1}
    buffer_store_dword v{t0}, v{voff}, s[4:7], s{soff} offen
    """)
MFMA = "v_mfma_f32_32x32x16_bf16"

def dpp_max(k, v, sdst, st, rows=(0, 16)):
    for m in ("quad_perm:[1,0,3,2]", "quad_perm:[2,3,0,1]", "row_half_mirror", "row_mirror"):
        k(f"s_nop 1\nv_max_f32_dpp v{v}, v{v}, v{v} {m} row_mask:0xf bank_mask:0xf")
    k(f"s_nop 1\nv_readlane_b32 s{sdst}, v{v}, {rows[0]}")
    for r in rows[1:]:
        k(f"v_readlane_b32 s{st}, v{v}, {r}\ns_max_u32 s{sdst}, s{sdst}, s{st}")
```

```python
from gen_common import *

def gen_prep():
    k = K("prep_kernel", 0, 512, 4096, 64)
    k(f"""
    s_load_dwordx2 s[20:21], s[0:1], {A_WS}
    s_load_dwordx4 s[24:27], s[0:1], {A_X}      ; x, wq
    s_load_dwordx4 s[28:31], s[0:1], {A_WK}
    s_load_dwordx2 s[32:33], s[0:1], {A_WO}
    s_load_dwordx4 s[36:39], s[0:1], {A_W1}     ; w1, b1
    s_load_dwordx2 s[34:35], s[0:1], {A_W2}
    v_lshrrev_b32 v1, 6, v0
    v_and_b32 v2, 15, v0
    v_readfirstlane_b32 s3, v1
    v_bfe_u32 v3, v0, 4, 1                      ; hf
    v_bfe_u32 v4, v0, 5, 1
    v_lshlrev_b32 v5, 4, v4
    v_lshl_add_u32 v5, v3, 2, v5
    v_lshlrev_b32 v7, 10, v4
    v_lshl_add_u32 v7, v3, 9, v7
    v_lshl_add_u32 v7, v2, 5, v7
    s_mov_b32 s18, 0x05040100
    s_mov_b32 s19, 0x07060302
    s_mov_b32 s23, 0x3f803f80
    s_mov_b32 s22, 0
    s_waitcnt lgkmcnt(0)
    """)
    k.srd(4, 20, WS_END)
    base = 0
    LP, LX, LE, LKV, LT = k.lab("pack"), k.lab("xp"), k.lab("end"), k.lab("kv"), k.lab("tr")
    def wjob(cnt, ptr, Krows, N, dst, wx=None, nbias=0, tgt=None):
        nonlocal base
        nx = k.lab("n")
        st = 2*N
        A, B, C, E, ds, dd = (64, 64*st, 32768, 4096, 32*st, 2048) if Krows == 512 else (32*st, 128, 2048, 2*86*1024, 64, 86*1024)
        k(f"s_cmp_ge_u32 s2, {base+cnt}\ns_cbranch_scc1 {nx}")
        k.srd(8, ptr, Krows*st)
        k.srd(60, 38, nbias)
        k(f"""
        s_sub_u32 s12, s2, {base}
        s_mov_b32 s13, {st}
        s_mul_i32 s14, s12, {A}
        s_mul_i32 s15, s3, {B}
        s_add_u32 s14, s14, s15
        s_mul_i32 s16, s12, {C}
        s_mul_i32 s15, s3, {E}
        s_add_u32 s16, s16, s15
        s_add_u32 s16, s16, {dst}
        s_add_u32 s17, s16, {dd}
        s_mov_b32 s15, {ds}
        """)
        if wx is not None:
            k(f"s_lshl_b32 s22, s12, 10\ns_add_u32 s22, s22, {WX + wx*1024}")
        k(f"s_branch {tgt or LP}\n{nx}:")
        base += cnt
    wjob(43, 36, 512, 1376, W1_P, 17, 2752)
    wjob(16, 26, 512, 512, WQ_P, 0)
    wjob(1, 28, 512, 16, WKV_P, 16, tgt=LKV)
    xbase = base
    k(f"s_cmp_lt_u32 s2, {base+64}\ns_cbranch_scc1 {LX}")
    base += 64
    wjob(16, 32, 512, 512, WO_P)
    wjob(43, 34, 1376, 512, W2_P)
    k.grid = base
    k(f"{LE}:\ns_endpgm")
    def offs():
        for j in range(8):
            k(f"s_mul_i32 s{40+j}, s13, {(j & 3) + 8*(j >> 2)}\ns_add_u32 s{40+j}, s{40+j}, s14\ns_add_u32 s{48+j}, s{40+j}, s15")
    def loads():
        for j in range(16):
            k(f"buffer_load_dword v{16+j}, v6, s[8:11], s{40+j} offen")
    k(f"{LKV}:\nv_and_b32 v6, 7, v2\nv_lshlrev_b32 v6, 2, v6\nv_lshl_add_u32 v6, v5, 5, v6")
    offs()
    k("s_mov_b32 exec_lo, 0x00ff00ff\ns_mov_b32 exec_hi, 0x00ff00ff")
    loads()
    k("s_not_b64 exec, exec\ns_mov_b32 s8, s30\ns_mov_b32 s9, s31")
    loads()
    k(f"s_mov_b64 exec, -1\ns_branch {LT}")
    k(f"{LP}:\nv_mul_lo_u32 v6, v5, s13\nv_lshl_add_u32 v6, v2, 2, v6")
    offs()
    loads()
    k(f"{LT}:\nv_mov_b32 v8, 0\nv_mov_b32 v9, 0")
    for i in range(2):
        k(f"s_waitcnt vmcnt({8 if i == 0 else 2})")
        for c in range(2):
            for p in range(4):
                k(f"v_perm_b32 v{32+8*i+4*c+p}, v{16+8*i+2*p+1}, v{16+8*i+2*p}, s{18+c}")
            k(f"buffer_store_dwordx4 {vr(32+8*i+4*c)}, v7, s[4:7], s{16+i} offen offset:{16*c}")
    k(f"s_cmp_eq_u32 s22, 0\ns_cbranch_scc1 {LE}")
    for i in range(2):
        for p in range(4):
            for c in range(2):
                k(f"v_dot2c_f32_bf16 v{8+c}, s23, v{32+8*i+4*c+p}")
    k(f"""
    v_lshlrev_b32 v10, 3, v0
    v_and_b32 v11, 31, v0
    s_lshl_b32 s14, s12, 6
    v_lshlrev_b32 v12, 1, v11
    ds_write_b64 v10, v[8:9]
    buffer_load_ushort v50, v12, s[60:63], s14 offen
    v_lshlrev_b32 v10, 11, v4
    v_lshl_add_u32 v10, v11, 2, v10
    s_waitcnt lgkmcnt(0)
    s_barrier
    s_cmp_lg_u32 s3, 0
    s_cbranch_scc1 {LE}
    """)
    for r in range(16):
        k(f"ds_read_b32 v{16+r}, v10 offset:{128*r}")
    k("v_lshlrev_b32 v3, 4, v0\nv_cmp_eq_u32 vcc, 0, v4\ns_waitcnt lgkmcnt(0)")
    for st in (8, 4, 2, 1):
        for r in range(st):
            k(f"v_add_f32 v{16+r}, v{16+r}, v{16+r+st}")
    k(f"""
    v_mov_b32 v17, v16
    s_nop 1
    v_permlane32_swap_b32 v16, v17
    s_nop 1
    v_add_f32 v16, v16, v17
    v_cvt_pk_bf16_f32 v48, v16, v16
    v_and_b32 v49, 0xffff0000, v48
    v_sub_f32 v49, v16, v49
    v_cvt_pk_bf16_f32 v49, v49, v49
    v_mov_b32 v51, 0
    s_waitcnt vmcnt(0)
    v_lshl_or_b32 v50, v50, 16, v50
    v_cndmask_b32 v48, 0, v48, vcc
    v_cndmask_b32 v49, 0, v49, vcc
    v_cndmask_b32 v50, 0, v50, vcc
    buffer_store_dwordx4 v[48:51], v3, s[4:7], s22 offen
    s_endpgm
    """)
    k(f"{LX}:")
    k.srd(8, 24, 2048*512*2)
    k(f"""
    s_sub_u32 s13, s2, {xbase}
    s_lshr_b32 s13, s13, 3
    s_and_b32 s14, s2, 7
    s_lshl_b32 s14, s14, 3
    s_add_u32 s13, s13, s14                     ; tb
    s_lshr_b32 s14, s3, 2
    v_and_b32 v1, 7, v0
    s_and_b32 s15, s3, 3
    s_lshl_b32 s15, s15, 3
    v_add_u32 v1, s15, v1
    v_bfe_u32 v2, v0, 3, 3
    v_lshlrev_b32 v3, 10, v1
    v_lshl_add_u32 v3, v2, 5, v3
    s_lshl_b32 s16, s13, 15
    s_lshl_b32 s17, s14, 9
    s_add_u32 s16, s16, s17
    buffer_load_dwordx4 v[16:19], v3, s[8:11], s16 offen
    buffer_load_dwordx4 v[20:23], v3, s[8:11], s16 offen offset:16
    buffer_load_dwordx4 v[24:27], v3, s[8:11], s16 offen offset:256
    buffer_load_dwordx4 v[28:31], v3, s[8:11], s16 offen offset:272
    v_lshlrev_b32 v4, 10, v2
    v_lshl_add_u32 v4, v1, 4, v4
    s_lshl_b32 s17, s13, 15
    s_lshl_b32 s18, s14, 14
    s_add_u32 s17, s17, s18
    s_add_u32 s17, s17, {X0P}
    s_add_u32 s18, s17, 8192
    v_mov_b32 v32, 0
    v_mov_b32 v33, 0
    v_lshrrev_b32 v5, 1, v2
    v_lshlrev_b32 v5, 10, v5
    v_lshl_add_u32 v5, v1, 4, v5
    v_and_b32 v6, 1, v2
    v_lshl_add_u32 v5, v6, 3, v5
    s_lshl_b32 s15, s13, 12
    s_lshl_b32 s16, s14, 9
    s_add_u32 s15, s15, s16
    s_add_u32 s15, s15, {STA}
    s_waitcnt vmcnt(2)
    v_swap_b32 v18, v20
    v_swap_b32 v19, v21
    buffer_store_dwordx4 v[16:19], v4, s[4:7], s17 offen
    buffer_store_dwordx4 v[20:23], v4, s[4:7], s17 offen offset:512
    s_waitcnt vmcnt(2)
    v_swap_b32 v26, v28
    v_swap_b32 v27, v29
    buffer_store_dwordx4 v[24:27], v4, s[4:7], s18 offen
    buffer_store_dwordx4 v[28:31], v4, s[4:7], s18 offen offset:512
    """)
    for r in range(16, 32):
        k(f"v_dot2c_f32_bf16 v32, s23, v{r}\nv_dot2c_f32_bf16 v33, v{r}, v{r}")
    k("""
    s_nop 3
    buffer_store_dwordx2 v[32:33], v5, s[4:7], s15 offen
    s_endpgm
    """)
    return k
```

```python
from gen_common import *
import math
QSCALE = 0.25*math.log2(math.e)
C1 = -2*math.sqrt(2/math.pi)*math.log2(math.e)
C2 = C1*0.044715
D, R = int(os.environ.get('RD', 3)), 6
SI = int(os.environ.get('SI', 3))
PF = int(os.environ.get('PF', 1))

def gen_ring(name, kind):
    final = kind == 'f2'
    f1 = kind == 'f1'
    XP, WP, nkb = {'q': (X0P, WQ_P, 32), 'wo': (OP, WO_P, 32), 'f2': (HP, W2_P, 86), 'f1': (X1P, W1_P, 32)}[kind]
    grid = 240 if f1 else 256
    lds = {'q': R*16384 + 4096, 'wo': R*16384, 'f2': R*16384, 'f1': R*12288}[kind]
    k = K(name, grid, 256, lds, 208)
    if f1: k.agpr = 96
    k(f"""
    s_cmp_ge_u32 s2, {grid}
    s_cbranch_scc1 {name}_end
    s_load_dwordx2 s[20:21], s[0:1], {A_WS}
    """)
    if kind == 'f2': k(f"s_load_dwordx4 s[24:27], s[0:1], {A_B2}")
    if f1: k(f"s_load_dwordx2 s[24:25], s[0:1], {A_B1}")
    k(f"""
    v_lshrrev_b32 v2, 6, v0
    v_and_b32 v3, 63, v0
    v_readfirstlane_b32 s3, v2                  ; wave
    v_lshlrev_b32 v1, 4, v3                     ; lane*16
    v_lshrrev_b32 v4, 5, v3                     ; hf
    v_and_b32 v5, 31, v3                        ; o
    s_and_b32 s16, s2, 7
    s_lshl_b32 s35, s3, 12
    s_lshl_b32 s36, s3, 10
    """)
    if f1:
        k(f"""
        s_lshl_b32 s16, s16, 1
        s_bfe_u32 s18, s2, 0x10003
        s_add_u32 s16, s16, s18
        s_lshl_b32 s16, s16, 2
        s_add_u32 s16, s16, s3
        s_lshr_b32 s17, s2, 4                   ; n group
        s_lshl_b32 s18, s18, 2
        s_add_u32 s34, s17, s18
        s_and_b32 s34, s34, 7
        s_lshl_b32 s34, s34, 12                 ; rotation
        s_mul_i32 s17, s17, 3                   ; nb0
        s_lshl_b32 s40, s16, 15
        s_add_u32 s40, s40, {XP}
        s_lshl_b32 s41, s17, 15
        s_add_u32 s41, s41, s36
        s_add_u32 s41, s41, {WP}
        v_mov_b32 v6, v1
        v_add_u32 v7, {3*12288}, v1
        """)
    else:
        k(f"""
        s_lshr_b32 s19, s2, 3                   ; local
        s_and_b32 s18, s19, 3
        s_lshl_b32 s16, s16, 2
        s_add_u32 s16, s16, s18
        s_lshr_b32 s17, s19, 2                  ; n pair
        """)
        if nkb == 32:
            k("s_lshl_b32 s18, s18, 1\ns_add_u32 s34, s17, s18\ns_and_b32 s34, s34, 7")
        else:
            k("s_mul_i32 s34, s17, 21\ns_lshr_b32 s34, s34, 3\ns_mul_i32 s18, s18, 5\ns_add_u32 s34, s34, s18\ns_sub_u32 s18, s34, 21\ns_cmp_ge_u32 s34, 21\ns_cselect_b32 s34, s18, s34")
        k(f"""
        s_lshl_b32 s34, s34, 12                 ; rotation
        s_and_b32 s18, s3, 1
        s_lshr_b32 s19, s3, 1
        s_mov_b32 s38, s17
        s_cmp_lt_u32 s3, 2
        s_cselect_b32 s40, s16, s17
        s_mov_b32 s41, {WP}
        s_cselect_b32 s41, {XP}, s41
        s_lshl_b32 s40, s40, 1
        s_add_u32 s40, s40, s18
        s_mul_i32 s40, s40, {nkb*1024}
        s_add_u32 s40, s40, s41
        s_lshl_b32 s16, s16, 1
        s_add_u32 s16, s16, s18
        s_lshl_b32 s17, s17, 1
        s_add_u32 s17, s17, s19
        s_lshl_b32 s18, s18, 12
        s_lshl_b32 s19, s19, 12
        s_add_u32 s19, s19, 8192
        v_add_u32 v6, s18, v1
        v_add_u32 v8, s19, v1
        s_lshl_b32 s44, s16, 15
        s_lshl_b32 s45, s17, 11
        s_add_u32 s44, s44, s45
        """)
    k("s_waitcnt lgkmcnt(0)")
    k.stamp(0)
    k.srd(4, 20, WS_END)
    if kind == 'f2':
        k.srd(8, 24, 1024)
        if final: k.srd(12, 26, 2048*1024)
    if f1: k.srd(8, 24, 2752)
    if kind == 'q':
        k(f"s_cmp_ge_u32 s38, 4\ns_cbranch_scc1 {name}_v")
        body(k, kind, nkb, final, 'k')
        k(f"{name}_end:\ns_endpgm\n{name}_v:")
        body(k, kind, nkb, final, 'v')
        k("s_endpgm")
    else:
        body(k, kind, nkb, final, False)
        k(f"{name}_end:\ns_endpgm")
    return k

def body(k, kind, nkb, final, kv):
    f1 = kind == 'f1'
    SLOT = 12288 if f1 else 16384
    KVB = R*SLOT
    nfull = nkb//4
    nst = (nkb + 3)//4
    G = lambda s: 4 if s < nfull else nkb - 4*nfull
    nr = 3 if (f1 or kv) else 2
    RB = 64 if (f1 or kv) else 48
    E = 160
    ar = lambda a: f"a[{a}:{a+3}]"
    seq = []
    last = {}
    def wait_for(tag):
        k(f"s_waitcnt vmcnt({len(seq)-1-seq.index(tag)})")
    if not f1:
        k(f"v_add_u32 v7, {3*SLOT}, v6\nv_add_u32 v9, {3*SLOT}, v8")
    if kv:
        k(f"""
        v_and_b32 v15, 3, v3
        v_lshrrev_b32 v2, 2, v3
        v_lshlrev_b32 v2, 9, v2
        v_lshl_add_u32 v2, v15, 4, v2           ; (l>>3)*1024 + hf'*512 + (l&3)*16
        s_lshl_b32 s41, s38, 6
        s_lshl_b32 s42, s3, 13
        s_add_u32 s42, s42, s41
        s_add_u32 m0, s36, {KVB}
        s_add_u32 s42, s42, {WKV_P}
        buffer_load_dwordx4 v2, s[4:7], s42 offen lds
        v_lshlrev_b32 v15, 4, v15
        v_lshl_add_u32 v3, v4, 9, v15           ; hf*512 + (l&3)*16
        v_lshl_add_u32 v15, v4, 6, v15
        v_add_u32 v15, {KVB}, v15
        s_lshr_b32 s39, s34, 3
        s_lshr_b32 s52, s3, 1
        s_lshl_b32 s53, s52, 8
        s_lshl_b32 s52, s52, 11
        v_add_u32 v15, s53, v15
        """)
        for j in range(4):
            k(f"v_subrev_u32 v{200+j}, s52, v{6+j}\nv_add_u32 v{6+j}, s52, v{6+j}")
        seq.append('kvw')
    def issue(s):
        sb = (s % R)*SLOT
        rot = "s34" if s < nfull else str(nfull*4096)
        C = []
        if f1:
            for j in range(3):
                C.append((f"s_add_u32 s43, s41, {rot}\n" if j == 0 else "") + f"s_add_u32 m0, s36, {sb + j*4096}\ns_add_u32 s42, s43, {j*32768}\nbuffer_load_dwordx4 v1, s[4:7], s42 offen lds")
            for i in range(4):
                C.append((f"s_add_u32 s42, s40, {rot}\n" if i == 0 else "") + f"buffer_load_dwordx4 {ar(16*(s%R)+4*i)}, v1, s[4:7], s42 offen offset:{1024*i}")
        else:
            for i in range(G(s)):
                C.append((f"s_add_u32 m0, s35, {sb}\ns_add_u32 s42, s40, {rot}\n" if i == 0 else "") + f"buffer_load_dwordx4 v1, s[4:7], s42 offen offset:{1024*i} lds")
        if s < nfull - 1:
            C[-1] += "\ns_add_u32 s34, s34, 4096\n" + ("s_and_b32 s34, s34, 0x7fff" if nkb == 32 else f"s_cmp_eq_u32 s34, {nfull*4096}\ns_cselect_b32 s34, 0, s34")
        for i in range(len(C)): seq.append((s, i))
        last[s] = seq[-1]
        return C
    def issue_epi():
        def ld(n, reg, voff, srd, soff, off):
            k(f"buffer_load_dword{'x%d' % n} {vr(reg, n)}, v{voff}, {srd}, s{soff} offen offset:{off}"); seq.append(('e', len(seq)))
        if kind in ('q', 'f1'):
            k(f"""
            s_lshl_b32 s46, s16, 12
            s_add_u32 s46, s46, {STA if kind == 'q' else STB}
            s_lshl_b32 s47, s17, 10
            s_add_u32 s47, s47, {WX + (17*1024 if f1 else 0)}
            """)
            for q in range(4): ld(4, E+4*q, 1, "s[4:7]", 46, 1024*q)
            for j in range(3 if f1 else 1): ld(4, E+16+4*j, 1, "s[4:7]", 47, 1024*j)
            if kv:
                k(f"s_add_u32 s48, s41, {WX + 16*1024}\ns_cmp_ge_u32 s3, 2\ns_cselect_b32 s48, 0x7ff00000, s48")
                ld(4, E+20, 3, "s[4:7]", 48, 0)
        else:
            k(f"s_add_u32 s45, s44, {X0P if kind == 'wo' else X1P}")
            for q in range(2): ld(4, E+4*q, 1, "s[4:7]", 45, 1024*q)
        if kind == 'f2':
            k(f"v_lshlrev_b32 v3, 3, v4\ns_lshl_b32 s47, s17, 6")
            for q in range(4): ld(2, E+8+2*q, 3, "s[8:11]", 47, 16*q)
        last['e'] = seq[-1]
    def init_acc():
        wait_for(last['e'])
        unp = lambda d, s, i: (f"v_lshlrev_b32 v{d}, 16, v{s+i//2}" if i % 2 == 0 else f"v_and_b32 v{d}, 0xffff0000, v{s+i//2}")
        if kind in ('q', 'f1'):
            emit_stats(k, E, 10, 11, 12, 13)
            B = E + 28
            k(f"""
            v_mul_f32 v12, v13, v11             ; sqrt(var+eps)
            v_cvt_pk_bf16_f32 v2, -v10, -v10
            v_cvt_pk_bf16_f32 v3, v12, v12
            v_cvt_pk_bf16_f32 v13, v11, v11
            v_and_b32 v2, 0xffff0000, v2
            v_and_b32 v3, 0xffff0000, v3
            v_and_b32 v13, 0xffff0000, v13
            v_sub_f32_e64 v2, -v10, v2
            v_sub_f32 v3, v12, v3
            v_sub_f32 v13, v11, v13
            v_cvt_pk_bf16_f32 v{B}, -v10, v2
            v_cvt_pk_bf16_f32 v{B+1}, -v10, v2
            v_cvt_pk_bf16_f32 v{B+2}, v12, v3
            v_cvt_pk_bf16_f32 v{B+3}, v11, v13
            s_nop 1
            """)
            for j in range(3 if f1 else 1):
                k(f"{MFMA} {vr(16+16*j,16)}, {vr(E+16+4*j)}, {vr(B)}, {vr(16+16*j,16)}")
            if kv == 'k': k(f"{MFMA} {vr(32,16)}, {vr(E+20)}, {vr(B)}, {vr(32,16)}")
            if kv == 'v':
                k(f"""
                {MFMA} {vr(32,16)}, {vr(B)}, {vr(E+20)}, {vr(32,16)}
                v_cmp_eq_u32 vcc, 0, v4
                v_mov_b32 v{E+24}, 0
                v_mov_b32 v{E+25}, 0
                v_mov_b32 v{E+26}, 0
                v_mov_b32 v{E+27}, 0x3f803f80
                v_cndmask_b32 v{E+27}, 0, v{E+27}, vcc
                s_nop 1
                {MFMA} {vr(48,16)}, {vr(B)}, {vr(E+24)}, 0
                """)
        else:
            for i in range(16):
                k(unp(E+16+i, E, i))
            if kind == 'f2':
                for i in range(16):
                    k(unp(2+i % 2, E+8, i)); k(f"v_add_f32 v{E+16+i}, v{E+16+i}, v{2+i%2}")
    def reads(s):
        h = 1 if (s % R) >= 3 else 0
        so = ((s % R) % 3)*SLOT
        b = RB + (s & 1)*16*nr
        Rd = []
        for i in range(G(s)):
            if f1:
                for j in range(3):
                    Rd.append((i, f"ds_read_b128 {vr(b+16*j+4*i)}, v{6+h} offset:{so+4096*j+1024*i}"))
            else:
                for j, a in enumerate((6, 8)):
                    if kv and i >= 2: a += 194
                    Rd.append((i, f"ds_read_b128 {vr(b+16*j+4*i)}, v{a+h} offset:{so+1024*i}"))
                if kv and i < 2:
                    Rd.append((i, ("v_add_u32 v14, s39, v15\ns_add_u32 s39, s39, 512\ns_and_b32 s39, s39, 0xfff\n" if i == 0 else "") + f"ds_read_b128 {vr(b+32+4*i)}, v14 offset:{128*i}"))
        return Rd
    def mfmas(s):
        b = RB + (s & 1)*16*nr
        M = []
        for i in range(G(s)):
            c = lambda a: ("0" if s == 0 and i == 0 else vr(a, 16))
            if f1:
                for j in range(3):
                    M.append((i, f"{MFMA} {vr(16+16*j,16)}, {vr(b+16*j+4*i)}, {ar(16*(s%R)+4*i)}, {c(16+16*j)}"))
            else:
                M.append((i, f"{MFMA} {vr(16,16)}, {vr(b+16+4*i)}, {vr(b+4*i)}, {c(16)}"))
                if kv == 'k' and i < 2: M.append((i, f"{MFMA} {vr(32,16)}, {vr(b+32+4*i)}, {vr(b+4*i)}, {c(32)}"))
                if kv == 'v' and i < 2: M.append((i, f"{MFMA} {vr(32,16)}, {vr(b+4*i)}, {vr(b+32+4*i)}, {c(32)}"))
        return M
    npf = [0]
    def prefetch(n):
        C = []
        for i in range(n):
            C.append(f"buffer_load_dwordx4 {vr(204)}, v1, s[12:15], s48 offen\ns_add_u32 s48, s48, {120*1024}")
            seq.append(('pf', npf[0])); npf[0] += 1
        return C
    for s in range(D):
        for c in issue(s): k(c)
    issue_epi()
    if f1:
        k.srd(12, 20, KMAX)
        k(f"s_lshr_b32 s48, s2, 3\ns_lshl_b32 s48, s48, 12\ns_add_u32 s48, s48, s36\ns_add_u32 s48, s48, {WX}")
    k.stamp(1)
    prev = []
    for s in range(nst + 1):
        Rd, C = [], []
        if s < nst:
            wait_for(last[s])
            k("s_barrier")
            Rd = reads(s)
            C = issue(s + D) if s + D < nst else (prefetch(-(-17//D)) if f1 and PF else [])
        else:
            k.stamp(4)
        M = mfmas(s-1) if s else []
        per = -(-len(Rd)//len(M)) if M else len(Rd)
        nrd, done = 0, -1
        for i in range(max(len(M), len(C), 1)):
            if i < len(M):
                if M[i][0] > done:
                    done = M[i][0]
                    k(f"s_waitcnt lgkmcnt({min(15, nrd + sum(1 for r in prev if r[0] > done))})")
                k(M[i][1])
            for r in Rd[nrd:nrd+per]: k(r[1])
            nrd = min(len(Rd), nrd + per)
            if i < len(C): k(C[i])
        assert nrd == len(Rd)
        prev = Rd
        if s == SI: init_acc()
        if s == 0: k.stamp(2)
        if s == nst//2: k.stamp(3)
    T = RB
    if kind == 'q':
        k(f"v_mul_f32 v12, {hex(f2u(QSCALE))}, v11\ns_add_u32 s45, s44, {QP}\ns_and_b32 s52, s3, 1\ns_lshl_b32 s52, s52, 12\nv_add_u32 v14, s52, v1\ns_nop 13")
        nq = 1 if kv == 'k' else 4
        L = k.lab("x")
        k(f"s_cmp_lt_u32 s3, 2\ns_cbranch_scc1 {L}")
        for q in range(nq): k(f"ds_write_b128 v14, {vr(32+4*q)} offset:{3*SLOT+1024*q}")
        k(f"{L}:")
        for i in range(16): k(f"v_mul_f32 v{16+i}, v{16+i}, v12")
    elif f1:
        k(f"""
        v_mov_b32 v13, v12
        v_mul_f32 v14, {hex(f2u(C1))}, v11
        v_mul_f32 v2, v11, v11
        v_mul_f32 v8, {hex(f2u(0.044715))}, v14
        v_mov_b32 v15, v14
        v_mul_f32 v8, v8, v2
        s_mul_i32 s49, s16, 86
        s_lshl_b32 s51, s17, 1
        s_add_u32 s49, s49, s51
        v_mov_b32 v9, v8
        s_lshl_b32 s49, s49, 10
        s_add_u32 s49, s49, {HP}
        s_add_u32 s50, s49, 2048
        s_add_u32 s51, s49, 4096
        s_cmp_eq_u32 s17, 42
        s_cselect_b32 s50, 0x7ff00000, s50
        s_cselect_b32 s51, 0x7ff00000, s51
        s_nop 7
        """)
        for g in range(6):
            P = [(16+8*g+2*p, T+16*(g & 1)+2*p) for p in range(4)]
            for a, t in P: k(f"v_pk_mul_f32 {vr(t,2)}, {vr(a,2)}, {vr(a,2)}")
            for a, t in P: k(f"v_pk_fma_f32 {vr(t,2)}, {vr(t,2)}, v[8:9], v[14:15]")
            for a, t in P: k(f"v_pk_mul_f32 {vr(t,2)}, {vr(a,2)}, {vr(t,2)}")
            for a, t in P: k(f"v_exp_f32 v{t}, v{t}\nv_exp_f32 v{t+1}, v{t+1}")
            for a, t in P: k(f"v_pk_fma_f32 {vr(t,2)}, {vr(t,2)}, v[12:13], v[12:13]")
            for a, t in P: k(f"v_rcp_f32 v{t}, v{t}\nv_rcp_f32 v{t+1}, v{t+1}")
            for a, t in P: k(f"v_pk_mul_f32 {vr(t,2)}, {vr(a,2)}, {vr(t,2)}")
            o = T + 32 + 4*g
            for p, (a, t) in enumerate(P): k(f"v_cvt_pk_bf16_f32 v{o+p}, v{t}, v{t+1}")
            k(f"buffer_store_dwordx4 {vr(o)}, v1, s[4:7], s{49+g//2} offen offset:{1024*(g&1)}")
        k("s_waitcnt vmcnt(6)")
        k.stamp(6)
        return
    else:
        k(f"s_add_u32 s45, s44, {X1P if kind == 'wo' else X0P}")
        if final:
            k(f"""
            v_lshlrev_b32 v6, 10, v5
            v_lshl_add_u32 v6, v4, 4, v6            ; o*1024 + hf*16
            s_lshl_b32 s48, s16, 15
            s_lshl_b32 s47, s17, 6
            s_add_u32 s48, s48, s47
            """)
        if True:
            k(f"""
            v_lshlrev_b32 v7, 4, v5
            v_lshl_add_u32 v7, v4, 2, v7        ; o*16 + hf*4
            s_lshl_b32 s46, s16, 12
            s_bfe_u32 s47, s17, 0x20001
            s_lshl_b32 s47, s47, 10
            s_add_u32 s46, s46, s47
            s_lshr_b32 s47, s17, 3
            s_lshl_b32 s47, s47, 9
            s_add_u32 s46, s46, s47
            s_and_b32 s47, s17, 1
            s_lshl_b32 s47, s47, 3
            s_add_u32 s46, s46, s47
            s_add_u32 s46, s46, {STB if kind == 'wo' else STA}
            """)
        k("s_nop 12")
        for i in range(16): k(f"v_add_f32 v{16+i}, v{16+i}, v{E+16+i}")
    for p in range(8):
        k(f"v_cvt_pk_bf16_f32 v{T+p}, v{16+2*p}, v{17+2*p}")
    k(f"buffer_store_dwordx4 {vr(T)}, v1, s[4:7], s45 offen")
    k(f"buffer_store_dwordx4 {vr(T+4)}, v1, s[4:7], s45 offen offset:1024")
    if final:
        for p in range(8): k(f"v_mov_b32 v{T+8+p}, v{T+p}")
        k(f"""
        v_permlane32_swap_b32 v{T+8}, v{T+10}
        v_permlane32_swap_b32 v{T+9}, v{T+11}
        s_nop 0
        v_permlane32_swap_b32 v{T+12}, v{T+14}
        v_permlane32_swap_b32 v{T+13}, v{T+15}
        s_nop 1
        buffer_store_dwordx4 {vr(T+8)}, v6, s[12:15], s48 offen
        buffer_store_dwordx4 {vr(T+12)}, v6, s[12:15], s48 offen offset:32
        """)
    if kind != 'q':
        emit_stats_out(k, 16, 12, 13, 7, 46)
    k.stamp(6)
    if kv:
        k(f"s_waitcnt lgkmcnt(0)\ns_barrier\ns_cmp_ge_u32 s3, 2\ns_cbranch_scc1 {k.name}_end")
        for q in range(nq): k(f"ds_read_b128 {vr(16+4*q)}, v14 offset:{3*SLOT+1024*q}")
        k("s_waitcnt lgkmcnt(0)")
        for i in range(4*nq): k(f"v_add_f32 v{32+i}, v{32+i}, v{16+i}")
    if kv == 'k':
        for i in range(4): k(f"v_mul_f32 v{32+i}, v{32+i}, v11")
        k(f"""
        v_cvt_pk_bf16_f32 v{T+8}, v32, v33
        v_cvt_pk_bf16_f32 v{T+9}, v34, v35
        v_mul_f32 v12, v32, v32
        v_fma_f32 v12, v33, v33, v12
        v_fma_f32 v12, v34, v34, v12
        v_fma_f32 v12, v35, v35, v12
        v_lshlrev_b32 v6, 4, v5
        s_lshl_b32 s45, s16, 10
        s_and_b32 s46, s38, 1
        s_lshl_b32 s46, s46, 9
        s_add_u32 s45, s45, s46
        s_lshr_b32 s46, s38, 1
        s_lshl_b32 s46, s46, 3
        s_add_u32 s45, s45, s46
        s_add_u32 s45, s45, {KP}
        buffer_store_dwordx2 {vr(T+8,2)}, v6, s[4:7], s45 offen
        """)
        dpp_max(k, 12, 30, 31)
        k(f"""
        v_mov_b32 v13, s30
        v_mov_b32 v6, 0
        s_lshl_b32 s45, s16, 4
        s_lshl_b32 s46, s38, 2
        s_add_u32 s45, s45, s46
        s_add_u32 s45, s45, {KMAX}
        buffer_store_dword v13, v6, s[4:7], s45 offen
        """)
    if kv == 'v':
        for i in range(16): k(f"v_mul_f32 v{32+i}, v{32+i}, v{48+i}")
        for p in range(8): k(f"v_cvt_pk_bf16_f32 v{T+8+p}, v{32+2*p}, v{33+2*p}")
        k(f"""
        s_lshl_b32 s46, s38, 2
        s_sub_u32 s46, s46, 16
        v_and_b32 v6, 3, v5
        v_add_u32 v6, s46, v6
        v_bfe_u32 v7, v5, 2, 1
        v_lshl_add_u32 v6, v7, 4, v6
        v_and_b32 v7, 27, v6
        v_cmp_eq_u32 vcc, 16, v7
        v_mov_b32 v8, 0x3f803f80
        v_lshlrev_b32 v6, 4, v6
        v_lshl_add_u32 v6, v4, 9, v6
        v_cndmask_b32 v8, 0, v8, vcc
        v_cmp_gt_u32 vcc, 4, v5
        s_lshl_b32 s45, s16, 11
        s_add_u32 s45, s45, {VP}
        s_nop 0
        """)
        for p in range(8): k(f"v_cndmask_b32 v{T+8+p}, v8, v{T+8+p}, vcc")
        k(f"""
        v_cmp_gt_u32 vcc, 8, v5
        s_and_saveexec_b64 s[30:31], vcc
        buffer_store_dwordx4 {vr(T+8)}, v6, s[4:7], s45 offen
        buffer_store_dwordx4 {vr(T+12)}, v6, s[4:7], s45 offen offset:1024
        """)
```

```python
import sys
from gen_common import *
from gen_prep import gen_prep
from gen_ring import gen_ring
from gen_attn import gen_attn
ref = open(f"cdna_kernels/{NAME}.s.ref").read().split("\n")
header = "\n".join(l for l in ref[:14]) + "\n"
prep = gen_prep()
attn = gen_attn()
f1 = gen_ring("ffn1_kernel", 'f1')
f2 = gen_ring("ffn2_kernel", 'f2')
ks = [prep, attn, f1, f2]
launches = [prep, attn, f1, f2, attn, f1, f2]
if os.environ.get("NOPS"):
    e = K("nop_kernel", 256, 256, 0, 32); e("s_endpgm"); ks.append(e)
    launches = [x for l in launches for x in (l, e)]
out = sys.argv[1] if len(sys.argv) > 1 else f"cdna_kernels/{NAME}.s"
open(out, "w").write(assemble(ks, launches, header))
```

```python
from gen_common import *
THR = 60.0

SC = os.environ.get('SC', 'sc1')
PSW = int(os.environ.get('PSW', 55))
PF_END = int(os.environ.get('PF_END', WQ_P))
def gen_attn():
    OL = 8*3*2304
    k = K("attn_kernel", 256, 512, OL + 32768, 176)
    k.agpr = 64
    XT = int(os.environ.get("XT", 0))
    n = k.name
    Q, O, S, P, KV, M = 16, 32, 96, 128, 136, 160
    def Kb(b): return KV + 12*b
    def Vb(b, h): return KV + 12*b + 4 + 4*h
    k(f"""
    s_cmp_ge_u32 s2, 256
    s_cbranch_scc1 {n}_end
    s_load_dwordx2 s[20:21], s[0:1], {A_WS}
    v_lshrrev_b32 v2, 6, v0
    v_and_b32 v3, 63, v0
    v_readfirstlane_b32 s3, v2                  ; wave
    v_lshlrev_b32 v1, 4, v3                     ; lane*16
    v_lshlrev_b32 v2, 2, v3                     ; lane*4
    s_and_b32 s16, s2, 7
    s_lshl_b32 s16, s16, 3
    s_lshr_b32 s17, s2, 5
    s_add_u32 s16, s16, s17                     ; tb
    s_bfe_u32 s17, s2, 0x20003
    {"s_lshr_b32 s16, s2, 2" if XT else ""}
    {"s_and_b32 s17, s2, 3" if XT else ""}
    s_lshl_b32 s38, s17, 2
    s_and_b32 s39, s3, 3
    s_add_u32 s38, s38, s39
    s_lshr_b32 s39, s3, 2                       ; k half
    s_lshl_b32 s52, s38, 15
    s_lshl_b32 s44, s39, 12
    s_add_u32 s52, s52, s44
    s_add_u32 s52, s52, {WO_P}
    s_lshl_b32 s53, s17, 13
    s_add_u32 s43, s52, s53
    s_and_b32 s18, s3, 1                        ; g
    s_lshr_b32 s19, s3, 1                       ; kq
    s_lshl_b32 s22, s16, 5
    s_lshl_b32 s17, s17, 3
    s_add_u32 s22, s22, s17
    s_lshl_b32 s17, s18, 2
    s_add_u32 s22, s22, s17
    s_waitcnt lgkmcnt(0)
    """)
    k.stamp(0)
    if PSW:
        k(f"s_setprio 1\ns_cmp_lt_u32 s3, 4\ns_cbranch_scc1 {n}_p\ns_setprio 2\n{n}_p:")
    k.srd(4, 20, WS_END)
    k.srd(8, 20, PF_END)
    k(f"s_lshr_b32 s42, s2, 3\ns_lshl_b32 s42, s42, 3\ns_add_u32 s42, s42, s3\ns_lshl_b32 s42, s42, 10\ns_add_u32 s42, s42, {W1_P}")
    for b in range(4):
        k(f"s_xor_b32 s23, s19, {b}\ns_add_u32 s23, s23, s22\ns_lshl_b32 s23, s23, 10\ns_add_u32 s{24+b}, s23, {QP}")
        k(f"buffer_load_dwordx4 {vr(Q+4*b)}, v1, s[4:7], s{24+b} offen")
    k(f"""
    s_mov_b32 s28, {KMAX}
    buffer_load_dwordx4 v[12:15], v1, s[4:7], s28 offen
    s_lshl_b32 s40, s19, 14
    s_add_u32 s40, s40, {KP}
    s_lshl_b32 s41, s19, 15
    s_add_u32 s41, s41, {VP}
    buffer_load_dwordx4 {vr(Kb(0))}, v1, s[4:7], s40 offen
    buffer_load_dwordx4 {vr(Vb(0,0))}, v1, s[4:7], s41 offen
    buffer_load_dwordx4 {vr(Vb(0,1))}, v1, s[4:7], s41 offen offset:1024
    s_add_u32 s40, s40, 1024
    s_add_u32 s41, s41, 2048
    """)
    for i in range(64):
        k(f"v_mov_b32 v{O+i}, 0")
    for i in range(4):
        k(f"v_mov_b32 v{P+4+i}, 0\nv_mov_b32 v{Vb(1,1)+i}, 0\nv_mov_b32 v{8+i}, 0")
    k("s_waitcnt vmcnt(3)\nv_add_f32 v6, v12, v13\nv_add_f32 v7, v14, v15\nv_add_f32 v6, v6, v7")
    for b in range(4):
        for r in range(4):
            k(f"v_dot2c_f32_bf16 v{8+b}, v{Q+4*b+r}, v{Q+4*b+r}")
    k(f"""
    v_max_f32_dpp v6, v6, v6 quad_perm:[1,0,3,2] row_mask:0xf bank_mask:0xf
    s_nop 2
    v_max_f32_dpp v6, v6, v6 quad_perm:[2,3,0,1] row_mask:0xf bank_mask:0xf
    v_permlane32_swap_b32 v8, v9
    v_permlane32_swap_b32 v10, v11
    v_max_f32_dpp v6, v6, v6 row_half_mirror row_mask:0xf bank_mask:0xf
    v_add_f32 v8, v8, v9
    v_add_f32 v10, v10, v11
    v_max_f32_dpp v6, v6, v6 row_mirror row_mask:0xf bank_mask:0xf
    v_max_f32 v8, v8, v10
    s_nop 0
    v_readlane_b32 s30, v6, 0
    v_readlane_b32 s31, v6, 16
    v_readlane_b32 s32, v6, 32
    v_readlane_b32 s33, v6, 48
    s_max_u32 s30, s30, s31
    s_max_u32 s32, s32, s33
    s_max_u32 s30, s30, s32
    v_mul_f32 v8, s30, v8
    s_mov_b32 s31, {hex(f2u(THR*THR))}
    v_cmp_nge_f32 vcc, s31, v8
    s_mov_b32 s34, 8
    s_nop 3
    s_cbranch_vccnz {n}_slow
    """)
    def wload(n):
        return f"buffer_load_dwordx4 a[{4*n}:{4*n+3}], v1, s[4:7], s43 offen offset:{1024*(n&3)}" + ("\ns_add_u32 s53, s53, 8192\ns_and_b32 s53, s53, 0x7fff\ns_add_u32 s43, s52, s53" if n & 3 == 3 else "")
    def main_loop(slow):
        L = k.lab("loop")
        for i in range(4): k(f"v_mov_b32 v{S+28+i}, 0")
        if slow:
            for i in range(16): k(wload(i))
        k(f"s_waitcnt vmcnt(0)\n{MFMA} {vr(S,16)}, {vr(Kb(0))}, {vr(Q)}, 0\ns_nop 15\n.p2align 6\n{L}:")
        for BB in range(2 if slow else 16):
            B = BB & 1
            for t in range(4):
                Sc, Sn = S + 16*(t & 1), S + 16*((t+1) & 1)
                tn, Bn = (t+1) & 3, (B ^ 1 if t == 3 else B)
                tp, Bp = (t-1) & 3, (B ^ 1 if t == 0 else B)
                def e(i):
                    if slow:
                        k(f"v_sub_f32 v{Sc+i}, v{Sc+i}, v{M+t}")
                    k(f"v_exp_f32 v{Sc+i}, v{Sc+i}")
                def c(p): k(f"v_cvt_pk_bf16_f32 v{P+p}, v{Sc+2*p}, v{Sc+2*p+1}")
                def cp(p): k(f"v_cvt_pk_bf16_f32 v{P+p}, v{Sn+2*p}, v{Sn+2*p+1}")
                if not slow and 4*BB + t == PSW:
                    k(f"s_cmp_lt_u32 s3, 4\ns_cbranch_scc1 {L}x\ns_setprio 0\n{L}x:")
                pf = not slow and 4 <= BB < 10
                e(0); e(1); cp(6); e(2); cp(7)
                if not (BB == 15 and t == 3):
                    if t == 3:
                        k(f"s_waitcnt vmcnt({0 if slow else 1 + pf})")
                    k(f"{MFMA} {vr(Sn,16)}, {vr(Kb(Bn))}, {vr(Q+4*tn)}, 0")
                e(3); e(4); c(0)
                k(f"{MFMA} {vr(O+16*tp,16)}, {vr(Vb(Bp,1))}, {vr(P+4)}, {vr(O+16*tp,16)}")
                if t == 0:
                    if BB < 15:
                        k(f"""
                        buffer_load_dwordx4 {vr(Kb(B^1))}, v1, s[4:7], s40 offen offset:{1024*B}
                        buffer_load_dwordx4 {vr(Vb(B^1,0))}, v1, s[4:7], s41 offen offset:{2048*B}
                        buffer_load_dwordx4 {vr(Vb(B^1,1))}, v1, s[4:7], s41 offen offset:{2048*B+1024}
                        """)
                    if not slow: k(wload(BB))
                    if pf: k(f"buffer_load_dwordx4 {vr(164)}, v1, s[8:11], s42 offen\ns_add_u32 s42, s42, 0x40000")
                e(5); e(6); c(1); e(7); e(8); c(2); e(9); e(10); c(3); e(11); e(12)
                k(f"{MFMA} {vr(O+16*t,16)}, {vr(Vb(B,0))}, {vr(P)}, {vr(O+16*t,16)}")
                c(4); e(13); e(14); c(5); e(15)
            if B: k("s_add_u32 s40, s40, 2048\ns_add_u32 s41, s41, 4096")
        if slow:
            k(f"s_sub_u32 s34, s34, 1\ns_cmp_lg_u32 s34, 0\ns_cbranch_scc1 {L}")
        k(f"""
        s_nop 0
        v_cvt_pk_bf16_f32 v{P+6}, v{S+28}, v{S+29}
        v_cvt_pk_bf16_f32 v{P+7}, v{S+30}, v{S+31}
        s_nop 1
        {MFMA} {vr(O+48,16)}, {vr(Vb(1,1))}, {vr(P+4)}, {vr(O+48,16)}
        """)
    k.stamp(1)
    main_loop(False)
    k.stamp(2)
    k(f"""
    {n}_fin:
    s_lshl_b32 s18, s18, 2
    s_lshl_b32 s44, s16, 15
    s_lshl_b32 s45, s38, 11
    s_add_u32 s45, s45, s44
    s_add_u32 s46, s45, {X0P}
    s_cmp_lg_u32 s39, 0
    s_cselect_b32 s46, 0x7ff00000, s46
    buffer_load_dwordx4 {vr(168)}, v1, s[4:7], s46 offen
    buffer_load_dwordx4 {vr(172)}, v1, s[4:7], s46 offen offset:1024
    s_add_u32 s44, s44, {OP}
    s_add_u32 s47, s22, s19
    s_lshl_b32 s47, s47, 10
    s_and_b32 s47, s47, 0x7fff
    s_nop 4
    """)
    for b in (1, 2, 3):
        k(f"""
        s_xor_b32 s30, s19, {b}
        s_add_u32 s30, s30, s18
        s_mul_i32 s30, s30, 6912
        v_add_u32 v6, s30, v1
        v_add_u32 v7, s30, v2
        ds_write_b128 v6, {vr(O+16*b)} offset:{(b-1)*2304}
        ds_write_b128 v6, {vr(O+16*b+4)} offset:{(b-1)*2304+1024}
        ds_write_b32 v7, v{O+16*b+8} offset:{(b-1)*2304+2048}
        """)
    k(f"""
    s_add_u32 s30, s19, s18
    s_mul_i32 s30, s30, 6912
    v_add_u32 v6, s30, v1
    v_add_u32 v7, s30, v2
    s_waitcnt lgkmcnt(0)
    s_barrier
    """)
    k.stamp(3)
    for s in range(3):
        k(f"""
        ds_read_b128 {vr(O+16+16*s)}, v6 offset:{s*2304}
        ds_read_b128 {vr(O+20+16*s)}, v6 offset:{s*2304+1024}
        ds_read_b32 v{O+24+16*s}, v7 offset:{s*2304+2048}
        """)
    for s in range(3):
        k(f"s_waitcnt lgkmcnt({6-3*s})")
        for i in (8, 0, 1, 2, 3, 4, 5, 6, 7):
            k(f"v_add_f32 v{O+i}, v{O+i}, v{O+16+16*s+i}")
    k(f"v_rcp_f32 v{O+8}, v{O+8}\ns_add_u32 s24, s24, {OP-QP}\ns_nop 0")
    for i in range(8):
        k(f"v_mul_f32 v{O+i}, v{O+i}, v{O+8}")
    for p in range(4):
        k(f"v_cvt_pk_bf16_f32 v{P+p}, v{O+2*p}, v{O+2*p+1}")
    k(f"""
    s_and_b32 s30, s47, 0x1fff
    s_add_u32 s30, s30, {OL}
    v_add_u32 v8, s30, v1
    s_lshl_b32 s30, s39, 12
    s_add_u32 s30, s30, {OL}
    v_add_u32 v10, s30, v1
    s_mov_b32 s34, 0x1000
    """)
    for p in range(4):
        k(f"v_min_u32 v{P+p}, -2, v{P+p}")
    k(f"""
    buffer_store_dwordx4 {vr(P)}, v1, s[4:7], s24 offen {SC}
    ds_write_b128 v8, {vr(P)}
    s_waitcnt vmcnt(1)
    """)
    k.stamp(4)
    for i in range(16):
        k(f"v_lshlrev_b32 v{O+i}, 16, v{168+i//2}" if i % 2 == 0 else f"v_and_b32 v{O+i}, 0xffff0000, v{168+i//2}")
    k("s_waitcnt lgkmcnt(0)\ns_barrier")
    for i in range(4):
        k(f"ds_read_b128 {vr(S+4*i)}, v10 offset:{1024*i}")
    for r in range(3):
        k(f"s_add_u32 s47, s47, 8192\ns_and_b32 s47, s47, 0x7fff\ns_add_u32 s{48+r}, s47, s44")
    k(f"""
    v_and_b32 v11, 31, v3
    v_lshrrev_b32 v9, 5, v3
    v_lshlrev_b32 v11, 4, v11
    v_lshl_add_u32 v11, v9, 2, v11              ; o*16 + hf*4
    s_and_b32 s30, s3, 3
    s_lshl_b32 s30, s30, 12
    v_add_u32 v9, s30, v1
    s_lshl_b32 s46, s16, 12
    s_bfe_u32 s47, s38, 0x20001
    s_lshl_b32 s47, s47, 10
    s_add_u32 s46, s46, s47
    s_lshr_b32 s47, s38, 3
    s_lshl_b32 s47, s47, 9
    s_add_u32 s46, s46, s47
    s_and_b32 s47, s38, 1
    s_lshl_b32 s47, s47, 3
    s_add_u32 s46, s46, s47
    s_add_u32 s46, s46, {STB}
    s_add_u32 s45, s45, {X1P}
    """)
    for i in range(4):
        k(f"s_waitcnt lgkmcnt({3-i})\n{MFMA} {vr(O,16)}, a[{4*i}:{4*i+3}], {vr(S+4*i)}, {vr(O,16)}")
    k("s_waitcnt vmcnt(0)")
    k.stamp(1)
    k(f"{n}_poll:")
    for r in range(3):
        k(f"buffer_load_dwordx4 {vr(Q+4*r)}, v1, s[4:7], s{48+r} offen {SC}")
    k(f"""
    s_sub_u32 s34, s34, 1
    s_cbranch_scc1 {n}_got
    s_waitcnt vmcnt(0)
    v_max3_u32 v6, v{Q}, v{Q+1}, v{Q+2}
    v_max3_u32 v7, v{Q+3}, v{Q+4}, v{Q+5}
    v_max3_u32 v6, v6, v{Q+6}, v{Q+7}
    v_max3_u32 v7, v7, v{Q+8}, v{Q+9}
    v_max3_u32 v6, v6, v{Q+10}, v{Q+11}
    v_max_u32 v6, v6, v7
    v_cmp_eq_u32 vcc, -1, v6
    s_nop 4
    s_cbranch_vccnz {n}_poll
    {n}_got:
    s_waitcnt vmcnt(0)
    """)
    k.stamp(0)
    if os.environ.get("PROF"): k("s_sub_u32 s71, 0x1000, s34")
    for r in range(3):
        k(f"ds_write_b128 v8, {vr(Q+4*r)} offset:{8192*(r+1)}")
    k("s_waitcnt lgkmcnt(0)\ns_barrier")
    k.stamp(5)
    for i in range(4, 16):
        k(f"ds_read_b128 {vr(S+4*i)}, v10 offset:{8192*(i//4) + 1024*(i&3)}")
    for i in range(4, 16):
        k(f"s_waitcnt lgkmcnt({15-i})\n{MFMA} {vr(O,16)}, a[{4*i}:{4*i+3}], {vr(S+4*i)}, {vr(O,16)}")
    k(f"s_cmp_eq_u32 s39, 0\ns_cbranch_scc1 {n}_red\ns_nop 15")
    for q in range(4):
        k(f"ds_write_b128 v9, {vr(O+4*q)} offset:{1024*q}")
    k(f"s_waitcnt lgkmcnt(0)\ns_barrier\ns_endpgm\n{n}_red:")
    k("s_barrier")
    for q in range(4):
        k(f"ds_read_b128 {vr(O+16+4*q)}, v9 offset:{1024*q}")
    for q in range(4):
        k(f"s_waitcnt lgkmcnt({3-q})")
        for i in range(4*q, 4*q+4):
            k(f"v_add_f32 v{O+i}, v{O+i}, v{O+16+i}")
    for p in range(8):
        k(f"v_cvt_pk_bf16_f32 v{P+p}, v{O+2*p}, v{O+2*p+1}")
    k(f"buffer_store_dwordx4 {vr(P)}, v1, s[4:7], s45 offen")
    k(f"buffer_store_dwordx4 {vr(P+4)}, v1, s[4:7], s45 offen offset:1024")
    emit_stats_out(k, O, 12, 13, 11, 46)
    k.stamp(6)
    k(f"""
    {n}_end:
    s_endpgm
    {n}_slow:
    s_mov_b32 s35, {KP}
    s_mov_b32 s36, 64
    """)
    for t in range(4):
        k(f"v_mov_b32 v{M+t}, 0xff800000")
    L = k.lab("mx")
    k(f"{L}:\nbuffer_load_dwordx4 {vr(Kb(1))}, v1, s[4:7], s35 offen\ns_waitcnt vmcnt(0)")
    for h in range(2):
        for t in range(2):
            k(f"{MFMA} {vr(S+16*t,16)}, {vr(Kb(1))}, {vr(Q+8*h+4*t)}, 0")
        k("s_nop 15\ns_nop 3")
        for t in range(2):
            for i in range(8):
                k(f"v_max3_f32 v{M+2*h+t}, v{M+2*h+t}, v{S+16*t+2*i}, v{S+16*t+2*i+1}")
    k(f"""
    s_add_u32 s35, s35, 1024
    s_sub_u32 s36, s36, 1
    s_cmp_lg_u32 s36, 0
    s_cbranch_scc1 {L}
    """)
    for t in range(4):
        k(f"v_mov_b32 v{8+t}, v{M+t}")
    k("s_nop 1")
    for t in range(4):
        k(f"v_permlane32_swap_b32 v{8+t}, v{M+t}")
    k("s_nop 1")
    for t in range(4):
        k(f"v_max_f32 v{M+t}, v{M+t}, v{8+t}")
    main_loop(True)
    k(f"s_branch {n}_fin")
    return k
```

```python
from gen_common import *
import math
QSCALE = 0.25*math.log2(math.e)
C1 = -2*math.sqrt(2/math.pi)*math.log2(math.e)
C2 = C1*0.044715
D, R = int(os.environ.get('RD', 3)), 6
SI = int(os.environ.get('SI', 3))
PF = int(os.environ.get('PF', 1))

def gen_ring(name, kind):
    final = kind == 'f2'
    f1 = kind == 'f1'
    XP, WP, nkb = {'q': (X0P, WQ_P, 32), 'wo': (OP, WO_P, 32), 'f2': (HP, W2_P, 86), 'f1': (X1P, W1_P, 32)}[kind]
    grid = 240 if f1 else 256
    lds = {'q': R*16384 + 4096, 'wo': R*16384, 'f2': R*16384, 'f1': R*12288}[kind]
    k = K(name, grid, 256, lds, 208)
    if f1: k.agpr = 96
    k(f"""
    s_cmp_ge_u32 s2, {grid}
    s_cbranch_scc1 {name}_end
    s_load_dwordx2 s[20:21], s[0:1], {A_WS}
    """)
    if kind == 'f2': k(f"s_load_dwordx4 s[24:27], s[0:1], {A_B2}")
    if f1: k(f"s_load_dwordx2 s[24:25], s[0:1], {A_B1}")
    k(f"""
    v_lshrrev_b32 v2, 6, v0
    v_and_b32 v3, 63, v0
    v_readfirstlane_b32 s3, v2                  ; wave
    v_lshlrev_b32 v1, 4, v3                     ; lane*16
    v_lshrrev_b32 v4, 5, v3                     ; hf
    v_and_b32 v5, 31, v3                        ; o
    s_and_b32 s16, s2, 7
    s_lshl_b32 s35, s3, 12
    s_lshl_b32 s36, s3, 10
    """)
    if f1:
        k(f"""
        s_lshl_b32 s16, s16, 1
        s_bfe_u32 s18, s2, 0x10003
        s_add_u32 s16, s16, s18
        s_lshl_b32 s16, s16, 2
        s_add_u32 s16, s16, s3
        s_lshr_b32 s17, s2, 4                   ; n group
        s_lshl_b32 s18, s18, 2
        s_add_u32 s34, s17, s18
        s_and_b32 s34, s34, 7
        s_lshl_b32 s34, s34, 12                 ; rotation
        s_mul_i32 s17, s17, 3                   ; nb0
        s_lshl_b32 s40, s16, 15
        s_add_u32 s40, s40, {XP}
        s_lshl_b32 s41, s17, 15
        s_add_u32 s41, s41, s36
        s_add_u32 s41, s41, {WP}
        v_mov_b32 v6, v1
        v_add_u32 v7, {3*12288}, v1
        """)
    else:
        k(f"""
        s_lshr_b32 s19, s2, 3                   ; local
        s_and_b32 s18, s19, 3
        s_lshl_b32 s16, s16, 2
        s_add_u32 s16, s16, s18
        s_lshr_b32 s17, s19, 2                  ; n pair
        """)
        if nkb == 32:
            k("s_lshl_b32 s18, s18, 1\ns_add_u32 s34, s17, s18\ns_and_b32 s34, s34, 7")
        else:
            k("s_mul_i32 s34, s17, 21\ns_lshr_b32 s34, s34, 3\ns_mul_i32 s18, s18, 5\ns_add_u32 s34, s34, s18\ns_sub_u32 s18, s34, 21\ns_cmp_ge_u32 s34, 21\ns_cselect_b32 s34, s18, s34")
        k(f"""
        s_lshl_b32 s34, s34, 12                 ; rotation
        s_and_b32 s18, s3, 1
        s_lshr_b32 s19, s3, 1
        s_mov_b32 s38, s17
        s_cmp_lt_u32 s3, 2
        s_cselect_b32 s40, s16, s17
        s_mov_b32 s41, {WP}
        s_cselect_b32 s41, {XP}, s41
        s_lshl_b32 s40, s40, 1
        s_add_u32 s40, s40, s18
        s_mul_i32 s40, s40, {nkb*1024}
        s_add_u32 s40, s40, s41
        s_lshl_b32 s16, s16, 1
        s_add_u32 s16, s16, s18
        s_lshl_b32 s17, s17, 1
        s_add_u32 s17, s17, s19
        s_lshl_b32 s18, s18, 12
        s_lshl_b32 s19, s19, 12
        s_add_u32 s19, s19, 8192
        v_add_u32 v6, s18, v1
        v_add_u32 v8, s19, v1
        s_lshl_b32 s44, s16, 15
        s_lshl_b32 s45, s17, 11
        s_add_u32 s44, s44, s45
        """)
    k("s_waitcnt lgkmcnt(0)")
    k.stamp(0)
    k.srd(4, 20, WS_END)
    if kind == 'f2':
        k.srd(8, 24, 1024)
        if final: k.srd(12, 26, 2048*1024)
    if f1: k.srd(8, 24, 2752)
    if kind == 'q':
        k(f"s_cmp_ge_u32 s38, 4\ns_cbranch_scc1 {name}_v")
        body(k, kind, nkb, final, 'k')
        k(f"{name}_end:\ns_endpgm\n{name}_v:")
        body(k, kind, nkb, final, 'v')
        k("s_endpgm")
    else:
        body(k, kind, nkb, final, False)
        k(f"{name}_end:\ns_endpgm")
    return k

def body(k, kind, nkb, final, kv):
    f1 = kind == 'f1'
    SLOT = 12288 if f1 else 16384
    KVB = R*SLOT
    nfull = nkb//4
    nst = (nkb + 3)//4
    G = lambda s: 4 if s < nfull else nkb - 4*nfull
    nr = 3 if (f1 or kv) else 2
    RB = 64 if (f1 or kv) else 48
    E = 160
    ar = lambda a: f"a[{a}:{a+3}]"
    seq = []
    last = {}
    def wait_for(tag):
        k(f"s_waitcnt vmcnt({len(seq)-1-seq.index(tag)})")
    if not f1:
        k(f"v_add_u32 v7, {3*SLOT}, v6\nv_add_u32 v9, {3*SLOT}, v8")
    if kv:
        k(f"""
        v_and_b32 v15, 3, v3
        v_lshrrev_b32 v2, 2, v3
        v_lshlrev_b32 v2, 9, v2
        v_lshl_add_u32 v2, v15, 4, v2           ; (l>>3)*1024 + hf'*512 + (l&3)*16
        s_lshl_b32 s41, s38, 6
        s_lshl_b32 s42, s3, 13
        s_add_u32 s42, s42, s41
        s_add_u32 m0, s36, {KVB}
        s_add_u32 s42, s42, {WKV_P}
        buffer_load_dwordx4 v2, s[4:7], s42 offen lds
        v_lshlrev_b32 v15, 4, v15
        v_lshl_add_u32 v3, v4, 9, v15           ; hf*512 + (l&3)*16
        v_lshl_add_u32 v15, v4, 6, v15
        v_add_u32 v15, {KVB}, v15
        s_lshr_b32 s39, s34, 3
        s_lshr_b32 s52, s3, 1
        s_lshl_b32 s53, s52, 8
        s_lshl_b32 s52, s52, 11
        v_add_u32 v15, s53, v15
        """)
        for j in range(4):
            k(f"v_subrev_u32 v{200+j}, s52, v{6+j}\nv_add_u32 v{6+j}, s52, v{6+j}")
        seq.append('kvw')
    def issue(s):
        sb = (s % R)*SLOT
        rot = "s34" if s < nfull else str(nfull*4096)
        C = []
        if f1:
            for j in range(3):
                C.append((f"s_add_u32 s43, s41, {rot}\n" if j == 0 else "") + f"s_add_u32 m0, s36, {sb + j*4096}\ns_add_u32 s42, s43, {j*32768}\nbuffer_load_dwordx4 v1, s[4:7], s42 offen lds")
            for i in range(4):
                C.append((f"s_add_u32 s42, s40, {rot}\n" if i == 0 else "") + f"buffer_load_dwordx4 {ar(16*(s%R)+4*i)}, v1, s[4:7], s42 offen offset:{1024*i}")
        else:
            for i in range(G(s)):
                C.append((f"s_add_u32 m0, s35, {sb}\ns_add_u32 s42, s40, {rot}\n" if i == 0 else "") + f"buffer_load_dwordx4 v1, s[4:7], s42 offen offset:{1024*i} lds")
        if s < nfull - 1:
            C[-1] += "\ns_add_u32 s34, s34, 4096\n" + ("s_and_b32 s34, s34, 0x7fff" if nkb == 32 else f"s_cmp_eq_u32 s34, {nfull*4096}\ns_cselect_b32 s34, 0, s34")
        for i in range(len(C)): seq.append((s, i))
        last[s] = seq[-1]
        return C
    def issue_epi():
        def ld(n, reg, voff, srd, soff, off):
            k(f"buffer_load_dword{'x%d' % n} {vr(reg, n)}, v{voff}, {srd}, s{soff} offen offset:{off}"); seq.append(('e', len(seq)))
        if kind in ('q', 'f1'):
            k(f"""
            s_lshl_b32 s46, s16, 12
            s_add_u32 s46, s46, {STA if kind == 'q' else STB}
            s_lshl_b32 s47, s17, 10
            s_add_u32 s47, s47, {WX + (17*1024 if f1 else 0)}
            """)
            for q in range(4): ld(4, E+4*q, 1, "s[4:7]", 46, 1024*q)
            for j in range(3 if f1 else 1): ld(4, E+16+4*j, 1, "s[4:7]", 47, 1024*j)
            if kv:
                k(f"s_add_u32 s48, s41, {WX + 16*1024}\ns_cmp_ge_u32 s3, 2\ns_cselect_b32 s48, 0x7ff00000, s48")
                ld(4, E+20, 3, "s[4:7]", 48, 0)
        else:
            k(f"s_add_u32 s45, s44, {X0P if kind == 'wo' else X1P}")
            for q in range(2): ld(4, E+4*q, 1, "s[4:7]", 45, 1024*q)
        if kind == 'f2':
            k(f"v_lshlrev_b32 v3, 3, v4\ns_lshl_b32 s47, s17, 6")
            for q in range(4): ld(2, E+8+2*q, 3, "s[8:11]", 47, 16*q)
        last['e'] = seq[-1]
    def init_acc():
        wait_for(last['e'])
        unp = lambda d, s, i: (f"v_lshlrev_b32 v{d}, 16, v{s+i//2}" if i % 2 == 0 else f"v_and_b32 v{d}, 0xffff0000, v{s+i//2}")
        if kind in ('q', 'f1'):
            emit_stats(k, E, 10, 11, 12, 13)
            B = E + 28
            k(f"""
            v_mul_f32 v12, v13, v11             ; sqrt(var+eps)
            v_cvt_pk_bf16_f32 v2, -v10, -v10
            v_cvt_pk_bf16_f32 v3, v12, v12
            v_cvt_pk_bf16_f32 v13, v11, v11
            v_and_b32 v2, 0xffff0000, v2
            v_and_b32 v3, 0xffff0000, v3
            v_and_b32 v13, 0xffff0000, v13
            v_sub_f32_e64 v2, -v10, v2
            v_sub_f32 v3, v12, v3
            v_sub_f32 v13, v11, v13
            v_cvt_pk_bf16_f32 v{B}, -v10, v2
            v_cvt_pk_bf16_f32 v{B+1}, -v10, v2
            v_cvt_pk_bf16_f32 v{B+2}, v12, v3
            v_cvt_pk_bf16_f32 v{B+3}, v11, v13
            s_nop 1
            """)
            for j in range(3 if f1 else 1):
                k(f"{MFMA} {vr(16+16*j,16)}, {vr(E+16+4*j)}, {vr(B)}, {vr(16+16*j,16)}")
            if kv == 'k': k(f"{MFMA} {vr(32,16)}, {vr(E+20)}, {vr(B)}, {vr(32,16)}")
            if kv == 'v':
                k(f"""
                {MFMA} {vr(32,16)}, {vr(B)}, {vr(E+20)}, {vr(32,16)}
                v_cmp_eq_u32 vcc, 0, v4
                v_mov_b32 v{E+24}, 0
                v_mov_b32 v{E+25}, 0
                v_mov_b32 v{E+26}, 0
                v_mov_b32 v{E+27}, 0x3f803f80
                v_cndmask_b32 v{E+27}, 0, v{E+27}, vcc
                s_nop 1
                {MFMA} {vr(48,16)}, {vr(B)}, {vr(E+24)}, 0
                """)
        else:
            for i in range(16):
                k(unp(E+16+i, E, i))
            if kind == 'f2':
                for i in range(16):
                    k(unp(2+i % 2, E+8, i)); k(f"v_add_f32 v{E+16+i}, v{E+16+i}, v{2+i%2}")
    def reads(s):
        h = 1 if (s % R) >= 3 else 0
        so = ((s % R) % 3)*SLOT
        b = RB + (s & 1)*16*nr
        Rd = []
        for i in range(G(s)):
            if f1:
                for j in range(3):
                    Rd.append((i, f"ds_read_b128 {vr(b+16*j+4*i)}, v{6+h} offset:{so+4096*j+1024*i}"))
            else:
                for j, a in enumerate((6, 8)):
                    if kv and i >= 2: a += 194
                    Rd.append((i, f"ds_read_b128 {vr(b+16*j+4*i)}, v{a+h} offset:{so+1024*i}"))
                if kv and i < 2:
                    Rd.append((i, ("v_add_u32 v14, s39, v15\ns_add_u32 s39, s39, 512\ns_and_b32 s39, s39, 0xfff\n" if i == 0 else "") + f"ds_read_b128 {vr(b+32+4*i)}, v14 offset:{128*i}"))
        return Rd
    def mfmas(s):
        b = RB + (s & 1)*16*nr
        M = []
        for i in range(G(s)):
            c = lambda a: ("0" if s == 0 and i == 0 else vr(a, 16))
            if f1:
                for j in range(3):
                    M.append((i, f"{MFMA} {vr(16+16*j,16)}, {vr(b+16*j+4*i)}, {ar(16*(s%R)+4*i)}, {c(16+16*j)}"))
            else:
                M.append((i, f"{MFMA} {vr(16,16)}, {vr(b+16+4*i)}, {vr(b+4*i)}, {c(16)}"))
                if kv == 'k' and i < 2: M.append((i, f"{MFMA} {vr(32,16)}, {vr(b+32+4*i)}, {vr(b+4*i)}, {c(32)}"))
                if kv == 'v' and i < 2: M.append((i, f"{MFMA} {vr(32,16)}, {vr(b+4*i)}, {vr(b+32+4*i)}, {c(32)}"))
        return M
    npf = [0]
    def prefetch(n):
        C = []
        for i in range(n):
            C.append(f"buffer_load_dwordx4 {vr(204)}, v1, s[12:15], s48 offen\ns_add_u32 s48, s48, {120*1024}")
            seq.append(('pf', npf[0])); npf[0] += 1
        return C
    for s in range(D):
        for c in issue(s): k(c)
    issue_epi()
    if kind == 'q':
        for i in range(4): k(f"v_mov_b32 v{204+i}, -1")
        k(f"s_add_u32 s45, s44, {OP}")
        for q in range(2):
            k(f"buffer_store_dwordx4 {vr(204)}, v1, s[4:7], s45 offen offset:{1024*q} sc1"); seq.append(('po', q))
    if f1:
        k.srd(12, 20, KMAX)
        k(f"s_lshr_b32 s48, s2, 3\ns_lshl_b32 s48, s48, 12\ns_add_u32 s48, s48, s36\ns_add_u32 s48, s48, {WX}")
    k.stamp(1)
    prev = []
    for s in range(nst + 1):
        Rd, C = [], []
        if s < nst:
            wait_for(last[s])
            k("s_barrier")
            Rd = reads(s)
            C = issue(s + D) if s + D < nst else (prefetch(-(-17//D)) if f1 and PF else [])
        else:
            k.stamp(4)
        M = mfmas(s-1) if s else []
        per = -(-len(Rd)//len(M)) if M else len(Rd)
        nrd, done = 0, -1
        for i in range(max(len(M), len(C), 1)):
            if i < len(M):
                if M[i][0] > done:
                    done = M[i][0]
                    k(f"s_waitcnt lgkmcnt({min(15, nrd + sum(1 for r in prev if r[0] > done))})")
                k(M[i][1])
            for r in Rd[nrd:nrd+per]: k(r[1])
            nrd = min(len(Rd), nrd + per)
            if i < len(C): k(C[i])
        assert nrd == len(Rd)
        prev = Rd
        if s == SI: init_acc()
        if s == 0: k.stamp(2)
        if s == nst//2: k.stamp(3)
    T = RB
    if kind == 'q':
        k(f"v_mul_f32 v12, {hex(f2u(QSCALE))}, v11\ns_add_u32 s45, s44, {QP}\ns_and_b32 s52, s3, 1\ns_lshl_b32 s52, s52, 12\nv_add_u32 v14, s52, v1\ns_nop 13")
        nq = 1 if kv == 'k' else 4
        L = k.lab("x")
        k(f"s_cmp_lt_u32 s3, 2\ns_cbranch_scc1 {L}")
        for q in range(nq): k(f"ds_write_b128 v14, {vr(32+4*q)} offset:{3*SLOT+1024*q}")
        k(f"{L}:")
        for i in range(16): k(f"v_mul_f32 v{16+i}, v{16+i}, v12")
    elif f1:
        k(f"""
        v_mov_b32 v13, v12
        v_mul_f32 v14, {hex(f2u(C1))}, v11
        v_mul_f32 v2, v11, v11
        v_mul_f32 v8, {hex(f2u(0.044715))}, v14
        v_mov_b32 v15, v14
        v_mul_f32 v8, v8, v2
        s_mul_i32 s49, s16, 86
        s_lshl_b32 s51, s17, 1
        s_add_u32 s49, s49, s51
        v_mov_b32 v9, v8
        s_lshl_b32 s49, s49, 10
        s_add_u32 s49, s49, {HP}
        s_add_u32 s50, s49, 2048
        s_add_u32 s51, s49, 4096
        s_cmp_eq_u32 s17, 42
        s_cselect_b32 s50, 0x7ff00000, s50
        s_cselect_b32 s51, 0x7ff00000, s51
        s_nop 7
        """)
        for g in range(6):
            P = [(16+8*g+2*p, T+16*(g & 1)+2*p) for p in range(4)]
            for a, t in P: k(f"v_pk_mul_f32 {vr(t,2)}, {vr(a,2)}, {vr(a,2)}")
            for a, t in P: k(f"v_pk_fma_f32 {vr(t,2)}, {vr(t,2)}, v[8:9], v[14:15]")
            for a, t in P: k(f"v_pk_mul_f32 {vr(t,2)}, {vr(a,2)}, {vr(t,2)}")
            for a, t in P: k(f"v_exp_f32 v{t}, v{t}\nv_exp_f32 v{t+1}, v{t+1}")
            for a, t in P: k(f"v_pk_fma_f32 {vr(t,2)}, {vr(t,2)}, v[12:13], v[12:13]")
            for a, t in P: k(f"v_rcp_f32 v{t}, v{t}\nv_rcp_f32 v{t+1}, v{t+1}")
            for a, t in P: k(f"v_pk_mul_f32 {vr(t,2)}, {vr(a,2)}, {vr(t,2)}")
            o = T + 32 + 4*g
            for p, (a, t) in enumerate(P): k(f"v_cvt_pk_bf16_f32 v{o+p}, v{t}, v{t+1}")
            k(f"buffer_store_dwordx4 {vr(o)}, v1, s[4:7], s{49+g//2} offen offset:{1024*(g&1)}")
        k("s_waitcnt vmcnt(6)")
        k.stamp(6)
        return
    else:
        k(f"s_add_u32 s45, s44, {X1P if kind == 'wo' else X0P}")
        if final:
            k(f"""
            v_lshlrev_b32 v6, 10, v5
            v_lshl_add_u32 v6, v4, 4, v6            ; o*1024 + hf*16
            s_lshl_b32 s48, s16, 15
            s_lshl_b32 s47, s17, 6
            s_add_u32 s48, s48, s47
            """)
        if True:
            k(f"""
            v_lshlrev_b32 v7, 4, v5
            v_lshl_add_u32 v7, v4, 2, v7        ; o*16 + hf*4
            s_lshl_b32 s46, s16, 12
            s_bfe_u32 s47, s17, 0x20001
            s_lshl_b32 s47, s47, 10
            s_add_u32 s46, s46, s47
            s_lshr_b32 s47, s17, 3
            s_lshl_b32 s47, s47, 9
            s_add_u32 s46, s46, s47
            s_and_b32 s47, s17, 1
            s_lshl_b32 s47, s47, 3
            s_add_u32 s46, s46, s47
            s_add_u32 s46, s46, {STB if kind == 'wo' else STA}
            """)
        k("s_nop 12")
        for i in range(16): k(f"v_add_f32 v{16+i}, v{16+i}, v{E+16+i}")
    for p in range(8):
        k(f"v_cvt_pk_bf16_f32 v{T+p}, v{16+2*p}, v{17+2*p}")
    k(f"buffer_store_dwordx4 {vr(T)}, v1, s[4:7], s45 offen")
    k(f"buffer_store_dwordx4 {vr(T+4)}, v1, s[4:7], s45 offen offset:1024")
    if final:
        for p in range(8): k(f"v_mov_b32 v{T+8+p}, v{T+p}")
        k(f"""
        v_permlane32_swap_b32 v{T+8}, v{T+10}
        v_permlane32_swap_b32 v{T+9}, v{T+11}
        s_nop 0
        v_permlane32_swap_b32 v{T+12}, v{T+14}
        v_permlane32_swap_b32 v{T+13}, v{T+15}
        s_nop 1
        buffer_store_dwordx4 {vr(T+8)}, v6, s[12:15], s48 offen
        buffer_store_dwordx4 {vr(T+12)}, v6, s[12:15], s48 offen offset:32
        """)
    if kind != 'q':
        emit_stats_out(k, 16, 12, 13, 7, 46)
    k.stamp(6)
    if kv:
        k(f"s_waitcnt lgkmcnt(0)\ns_barrier\ns_cmp_ge_u32 s3, 2\ns_cbranch_scc1 {k.name}_end")
        for q in range(nq): k(f"ds_read_b128 {vr(16+4*q)}, v14 offset:{3*SLOT+1024*q}")
        k("s_waitcnt lgkmcnt(0)")
        for i in range(4*nq): k(f"v_add_f32 v{32+i}, v{32+i}, v{16+i}")
    if kv == 'k':
        for i in range(4): k(f"v_mul_f32 v{32+i}, v{32+i}, v11")
        k(f"""
        v_cvt_pk_bf16_f32 v{T+8}, v32, v33
        v_cvt_pk_bf16_f32 v{T+9}, v34, v35
        v_mul_f32 v12, v32, v32
        v_fma_f32 v12, v33, v33, v12
        v_fma_f32 v12, v34, v34, v12
        v_fma_f32 v12, v35, v35, v12
        v_lshlrev_b32 v6, 4, v5
        s_lshl_b32 s45, s16, 10
        s_and_b32 s46, s38, 1
        s_lshl_b32 s46, s46, 9
        s_add_u32 s45, s45, s46
        s_lshr_b32 s46, s38, 1
        s_lshl_b32 s46, s46, 3
        s_add_u32 s45, s45, s46
        s_add_u32 s45, s45, {KP}
        buffer_store_dwordx2 {vr(T+8,2)}, v6, s[4:7], s45 offen
        """)
        dpp_max(k, 12, 30, 31)
        k(f"""
        v_mov_b32 v13, s30
        v_mov_b32 v6, 0
        s_lshl_b32 s45, s16, 4
        s_lshl_b32 s46, s38, 2
        s_add_u32 s45, s45, s46
        s_add_u32 s45, s45, {KMAX}
        buffer_store_dword v13, v6, s[4:7], s45 offen
        """)
    if kv == 'v':
        for i in range(16): k(f"v_mul_f32 v{32+i}, v{32+i}, v{48+i}")
        for p in range(8): k(f"v_cvt_pk_bf16_f32 v{T+8+p}, v{32+2*p}, v{33+2*p}")
        k(f"""
        s_lshl_b32 s46, s38, 2
        s_sub_u32 s46, s46, 16
        v_and_b32 v6, 3, v5
        v_add_u32 v6, s46, v6
        v_bfe_u32 v7, v5, 2, 1
        v_lshl_add_u32 v6, v7, 4, v6
        v_and_b32 v7, 27, v6
        v_cmp_eq_u32 vcc, 16, v7
        v_mov_b32 v8, 0x3f803f80
        v_lshlrev_b32 v6, 4, v6
        v_lshl_add_u32 v6, v4, 9, v6
        v_cndmask_b32 v8, 0, v8, vcc
        v_cmp_gt_u32 vcc, 4, v5
        s_lshl_b32 s45, s16, 11
        s_add_u32 s45, s45, {VP}
        s_nop 0
        """)
        for p in range(8): k(f"v_cndmask_b32 v{T+8+p}, v8, v{T+8+p}, vcc")
        k(f"""
        v_cmp_gt_u32 vcc, 8, v5
        s_and_saveexec_b64 s[30:31], vcc
        buffer_store_dwordx4 {vr(T+8)}, v6, s[4:7], s45 offen
        buffer_store_dwordx4 {vr(T+12)}, v6, s[4:7], s45 offen offset:1024
        """)
```

```python
from gen_common import *
import math
QSCALE = 0.25*math.log2(math.e)
THR = 60.0

SC = os.environ.get('SC', 'sc1')
SCK = os.environ.get('SCK', 'sc1')
PE = int(os.environ.get('PE', 1))
PSW = int(os.environ.get('PSW', 55))
PF_END = int(os.environ.get('PF_END', WQ_P))
def gen_attn():
    OL = 8*3*2304
    k = K("attn_kernel", 256, 512, OL + 32768, 176)
    k.agpr = 64
    XT = int(os.environ.get("XT", 0))
    n = k.name
    Q, O, S, P, KV, M = 16, 32, 96, 128, 136, 160
    def Kb(b): return KV + 12*b
    def Vb(b, h): return KV + 12*b + 4 + 4*h
    k(f"""
    s_cmp_ge_u32 s2, 256
    s_cbranch_scc1 {n}_end
    s_load_dwordx2 s[20:21], s[0:1], {A_WS}
    v_lshrrev_b32 v2, 6, v0
    v_and_b32 v3, 63, v0
    v_readfirstlane_b32 s3, v2                  ; wave
    v_lshlrev_b32 v1, 4, v3                     ; lane*16
    v_lshlrev_b32 v2, 2, v3                     ; lane*4
    s_and_b32 s16, s2, 7
    s_lshl_b32 s16, s16, 3
    s_lshr_b32 s17, s2, 5
    s_add_u32 s16, s16, s17                     ; tb
    s_bfe_u32 s17, s2, 0x20003
    {"s_lshr_b32 s16, s2, 2" if XT else ""}
    {"s_and_b32 s17, s2, 3" if XT else ""}
    s_mov_b32 s54, s17
    s_lshl_b32 s38, s17, 2
    s_and_b32 s39, s3, 3
    s_add_u32 s38, s38, s39
    s_lshr_b32 s39, s3, 2                       ; k half
    s_lshl_b32 s52, s38, 15
    s_lshl_b32 s44, s39, 12
    s_add_u32 s52, s52, s44
    s_add_u32 s52, s52, {WO_P}
    s_lshl_b32 s53, s17, 13
    s_add_u32 s43, s52, s53
    s_and_b32 s18, s3, 1                        ; g
    s_lshr_b32 s19, s3, 1                       ; kq
    s_lshl_b32 s22, s16, 5
    s_lshl_b32 s17, s17, 3
    s_add_u32 s22, s22, s17
    s_lshl_b32 s17, s18, 2
    s_add_u32 s22, s22, s17
    s_waitcnt lgkmcnt(0)
    """)
    if PSW:
        k(f"s_setprio 1\ns_cmp_lt_u32 s3, 4\ns_cbranch_scc1 {n}_p\ns_setprio 2\n{n}_p:")
    k.srd(4, 20, WS_END)
    k.srd(8, 20, PF_END)
    k(f"s_lshr_b32 s42, s2, 3\ns_lshl_b32 s42, s42, 3\ns_add_u32 s42, s42, s3\ns_lshl_b32 s42, s42, 10\ns_add_u32 s42, s42, {W1_P}")
    KVP, QX, QL, KM = 4096, 36864, 4096, 53248
    XO, WK, ST, B, WXQ, WXK, SEL, KA, QA = 96, 112, 64, 80, 84, 88, 92, 32, 48
    OOB = "0x7ff00000"
    def wq_loads():
        for i in range(16):
            k(f"buffer_load_dwordx4 a[{4*i}:{4*i+3}], v1, s[4:7], s55 offen offset:{1024*(i&3)}" + ("\ns_add_u32 s55, s55, 4096" if i & 3 == 3 else ""))
    k(f"""
    s_add_u32 s24, s22, s19
    s_lshl_b32 s24, s24, 10
    s_add_u32 s24, s24, {QP}
    s_lshl_b32 s56, s3, 12                      ; wave*4096
    s_lshl_b32 s26, s16, 15
    s_add_u32 s26, s26, s56
    s_add_u32 s26, s26, {X0P}
    s_and_b32 s27, s3, 3
    s_lshl_b32 s27, s27, 10
    s_lshl_b32 s28, s16, 12
    s_add_u32 s28, s28, s27
    s_mov_b32 m0, s27
    s_add_u32 s28, s28, {STA}
    s_cmp_ge_u32 s3, 4
    s_cbranch_scc1 {n}_ns
    buffer_load_dwordx4 v1, s[4:7], s28 offen lds
    {n}_ns:
    """)
    for i in range(4): k(f"buffer_load_dwordx4 {vr(XO+4*i)}, v1, s[4:7], s26 offen offset:{1024*i}")
    k(f"""
    v_and_b32 v4, 31, v3
    s_lshl_b32 s27, s54, 8
    v_add_u32 v5, s27, v1
    v_mov_b32 v6, {OOB}
    v_cmp_gt_u32 vcc, 16, v4
    s_add_u32 s27, s56, {WKV_P}
    s_cmp_ge_u32 s54, 2
    s_cselect_b32 s27, {OOB}, s27
    v_cndmask_b32 v5, v6, v5, vcc
    s_cmp_lt_u32 s3, 2
    s_mov_b32 s28, {OOB}
    s_cselect_b32 s28, {WX+16*1024}, s28
    s_lshl_b32 s29, s38, 10
    s_add_u32 s29, s29, {WX}
    s_cmp_lg_u32 s39, 0
    s_cselect_b32 s29, {OOB}, s29
    s_lshl_b32 s55, s38, 15
    s_lshl_b32 s30, s39, 14
    s_add_u32 s55, s55, s30
    s_add_u32 s55, s55, {WQ_P}
    """)
    for i in range(4): k(f"buffer_load_dwordx4 {vr(WK+4*i)}, v5, s[4:7], s27 offen offset:{1024*i}")
    k(f"""
    buffer_load_dwordx4 {vr(WXK)}, v5, s[4:7], s28 offen
    buffer_load_dwordx4 {vr(WXQ)}, v1, s[4:7], s29 offen
    s_add_u32 s30, s56, {OL}
    v_add_u32 v6, s30, v1
    v_add_u32 v7, s56, v1
    s_cmp_lt_u32 s54, 2
    s_cselect_b32 s57, s54, -1
    s_cselect_b32 s58, s54, 7
    s_add_u32 s57, s57, 1
    s_barrier
    s_cmp_gt_u32 s3, s58
    s_cbranch_scc1 {n}_nw
    """)
    wq_loads()
    k(f"s_waitcnt vmcnt(16)\ns_branch {n}_nw2\n{n}_nw:\ns_waitcnt vmcnt(0)\n{n}_nw2:")
    for i in range(4): k(f"ds_write_b128 v6, {vr(XO+4*i)} offset:{1024*i}")
    k(f"s_cmp_ge_u32 s54, 2\ns_cbranch_scc1 {n}_k2\ns_cmp_eq_u32 s54, 0\ns_cbranch_scc1 {n}_k1")
    for i in range(4): k(f"{MFMA} {vr(KA,16)}, {vr(XO+4*i)}, {vr(WK+4*i)}, {vr(KA,16) if i else 0}")
    k(f"s_nop 15\ns_nop 1\nds_write_b128 v7, {vr(KA+8)} offset:{KVP+2048}\nds_write_b128 v7, {vr(KA+12)} offset:{KVP+3072}")
    k(f"s_branch {n}_k4\n{n}_k1:")
    for i in range(4): k(f"{MFMA} {vr(KA,16)}, {vr(WK+4*i)}, {vr(XO+4*i)}, {vr(KA,16) if i else 0}")
    k(f"""
    s_nop 15
    s_nop 1
    {n}_k4:
    ds_write_b128 v7, {vr(KA)} offset:{KVP}
    ds_write_b128 v7, {vr(KA+4)} offset:{KVP+1024}
    {n}_k2:
    s_lshl_b32 s30, s3, 11
    v_add_u32 v14, s30, v1
    s_xor_b32 s30, s3, 1
    s_lshl_b32 s30, s30, 12
    v_add_u32 v15, s30, v14
    s_waitcnt lgkmcnt(0)
    s_barrier
    """)
    k.stamp(0)
    for q in range(4): k(f"ds_read_b128 {vr(ST+4*q)}, v1 offset:{1024*q}")
    k(f"s_cmp_ge_u32 s3, s57\ns_cbranch_scc1 {n}_k8\ns_setprio 3")
    for w in range(1, 8):
        for q in range(2): k(f"ds_read_b128 {vr(96+8*(w-1)+4*q)}, v{15 if w == 1 else 14} offset:{KVP+(4096*w if w > 1 else 0)+1024*q}")
    k(f"""
    s_waitcnt lgkmcnt(14)
    s_branch {n}_k9
    {n}_k8:
    s_cmp_le_u32 s3, s58
    s_cbranch_scc1 {n}_kb
    """)
    wq_loads()
    k(f"""
    {n}_kb:
    s_waitcnt lgkmcnt(0)
    {n}_k9:
    v_cmp_gt_u32 vcc, 32, v3
    v_mov_b32 v{SEL}, 0
    v_mov_b32 v{SEL+1}, 0
    v_mov_b32 v{SEL+2}, 0
    v_mov_b32 v{SEL+3}, 0x3f803f80
    v_cndmask_b32 v{SEL+3}, 0, v{SEL+3}, vcc
    """)
    emit_stats(k, ST, 10, 11, 12, 13)
    k(f"""
    v_mul_f32 v12, v13, v11                     ; sqrt(var+eps)
    v_cvt_pk_bf16_f32 v8, -v10, -v10
    v_cvt_pk_bf16_f32 v9, v12, v12
    v_cvt_pk_bf16_f32 v13, v11, v11
    v_and_b32 v8, 0xffff0000, v8
    v_and_b32 v9, 0xffff0000, v9
    v_and_b32 v13, 0xffff0000, v13
    v_sub_f32_e64 v8, -v10, v8
    v_sub_f32 v9, v12, v9
    v_sub_f32 v13, v11, v13
    v_cvt_pk_bf16_f32 v{B}, -v10, v8
    v_cvt_pk_bf16_f32 v{B+1}, -v10, v8
    v_cvt_pk_bf16_f32 v{B+2}, v12, v9
    v_cvt_pk_bf16_f32 v{B+3}, v11, v13
    s_cmp_ge_u32 s3, s57
    s_cbranch_scc1 {n}_q
    s_lshl_b32 s30, s16, 7
    s_add_u32 s30, s30, {KMAX}
    s_cmp_eq_u32 s54, 0
    s_cbranch_scc1 {n}_k3
    {MFMA} {vr(KA,16)}, {vr(B)}, {vr(WXK)}, {vr(KA,16)}
    {MFMA} {vr(QA,16)}, {vr(B)}, {vr(SEL)}, 0
    s_branch {n}_k7
    {n}_k3:
    {MFMA} {vr(KA,16)}, {vr(WXK)}, {vr(B)}, {vr(KA,16)}
    {n}_k7:
    v_and_b32 v9, 27, v4
    v_cmp_eq_u32 vcc, 16, v9
    v_mov_b32 v9, 0x3f803f80
    s_nop 1
    v_cndmask_b32 v9, 0, v9, vcc
    """)
    for w in range(1, 7):
        k(f"s_waitcnt lgkmcnt({12-2*w})")
        for i in range(8): k(f"v_add_f32 v{96+i}, v{96+i}, v{96+8*w+i}")
    k(f"s_cmp_eq_u32 s54, 0\ns_cbranch_scc1 {n}_k5\ns_cmp_eq_u32 s3, 0\ns_cbranch_scc1 {n}_ka")
    for i in range(8): k(f"v_mov_b32 v{KA+i}, v{KA+8+i}\nv_mov_b32 v{QA+i}, v{QA+8+i}")
    k(f"{n}_ka:")
    for i in range(8): k(f"v_add_f32 v{96+i}, v{96+i}, v{KA+i}")
    for i in range(8): k(f"v_mul_f32 v{96+i}, v{96+i}, v{QA+i}")
    for p in range(4): k(f"v_cvt_pk_bf16_f32 v{104+p}, v{96+2*p}, v{97+2*p}")
    for p in range(4): k(f"v_or_b32 v{104+p}, v{104+p}, v9")
    k(f"""
    s_lshl_b32 s31, s16, 1
    s_add_u32 s31, s31, s3
    s_lshl_b32 s31, s31, 10
    s_add_u32 s31, s31, {VP}
    buffer_store_dwordx4 {vr(104)}, v1, s[4:7], s31 offen {SC}
    s_lshl_b32 s31, s3, 2
    s_add_u32 s30, s30, s31
    s_add_u32 s30, s30, 4
    s_mov_b32 s32, 0
    s_branch {n}_k6
    {n}_k5:
    """)
    for i in range(8): k(f"v_add_f32 v{96+i}, v{96+i}, v{KA+i}")
    for i in range(8): k(f"v_mul_f32 v{96+i}, v{96+i}, v11")
    for p in range(4): k(f"v_cvt_pk_bf16_f32 v{104+p}, v{96+2*p}, v{97+2*p}")
    k(f"""
    s_lshl_b32 s31, s16, 10
    s_add_u32 s31, s31, {KP}
    buffer_store_dwordx4 {vr(104)}, v1, s[4:7], s31 offen {SC}
    v_mul_f32 v12, v96, v96
    """)
    for i in range(1, 8): k(f"v_fma_f32 v12, v{96+i}, v{96+i}, v12")
    k("v_mov_b32 v13, v12\ns_nop 1\nv_permlane32_swap_b32 v12, v13\ns_nop 1\nv_add_f32 v12, v12, v13")
    dpp_max(k, 12, 32, 33)
    k(f"""
    s_min_u32 s32, s32, -2
    {n}_k6:
    v_mov_b32 v13, s32
    v_mov_b32 v9, 0
    s_mov_b64 exec, 1
    s_waitcnt vmcnt(0)
    buffer_store_dword v13, v9, s[4:7], s30 offen {SC}
    s_mov_b64 exec, -1
    s_setprio 1
    """)
    k.stamp(6)
    k(f"""
    {n}_q:
    s_lshl_b32 s30, s39, 14
    s_add_u32 s30, s30, {OL}
    v_add_u32 v6, s30, v1
    v_lshlrev_b32 v5, 7, v3
    s_mov_b32 s28, {KMAX}
    s_mov_b32 s34, 0x1000
    """)
    for i in range(16): k(f"ds_read_b128 {vr(96+4*i)}, v6 offset:{1024*i}")
    k(f"{MFMA} {vr(QA,16)}, {vr(WXQ)}, {vr(B)}, 0")
    for i in range(16):
        if i == 15: k(f"s_cmp_lt_u32 s3, s57\ns_cbranch_scc1 {n}_kc\ns_waitcnt vmcnt(0)\n{n}_kc:")
        k(f"s_waitcnt vmcnt({max(15-i, 1)}) lgkmcnt({15-i})\n{MFMA} {vr(QA,16)}, a[{4*i}:{4*i+3}], {vr(96+4*i)}, {vr(QA,16)}")
    k.stamp(7)
    k(f"""
    s_xor_b32 s30, s3, 4
    s_lshl_b32 s30, s30, 11
    v_add_u32 v6, s30, v1
    s_lshl_b32 s30, s3, 11
    v_add_u32 v7, s30, v1
    v_mul_f32 v12, {hex(f2u(QSCALE))}, v11
    s_lshl_b32 s40, s19, 14
    s_add_u32 s40, s40, {KP}
    s_lshl_b32 s41, s19, 15
    s_add_u32 s41, s41, {VP}
    s_nop 7
    s_cmp_eq_u32 s39, 0
    s_cbranch_scc1 {n}_sw
    """)
    for i in range(8): k(f"v_swap_b32 v{QA+i}, v{QA+8+i}")
    k(f"""
    {n}_sw:
    ds_write_b128 v6, {vr(QA+8)} offset:{QX}
    ds_write_b128 v6, {vr(QA+12)} offset:{QX+1024}
    s_and_b32 s30, s3, 3
    s_lshl_b32 s30, s30, 1
    s_add_u32 s30, s30, s39
    s_lshl_b32 s30, s30, 10
    v_add_u32 v8, s30, v1
    s_waitcnt lgkmcnt(0)
    s_barrier
    ds_read_b128 {vr(QA+8)}, v7 offset:{QX}
    ds_read_b128 {vr(QA+12)}, v7 offset:{QX+1024}
    s_waitcnt lgkmcnt(0)
    """)
    for i in range(8): k(f"v_add_f32 v{QA+i}, v{QA+i}, v{QA+8+i}")
    for i in range(8): k(f"v_mul_f32 v{QA+i}, v{QA+i}, v12")
    for p in range(4): k(f"v_cvt_pk_bf16_f32 v{P+p}, v{QA+2*p}, v{QA+2*p+1}")
    k(f"ds_write_b128 v8, {vr(P)} offset:{QL}\ns_lshl_b32 s31, s18, 2")
    for b in range(4):
        k(f"s_xor_b32 s30, s19, {b}\ns_add_u32 s30, s30, s31\ns_lshl_b32 s30, s30, 10\nv_add_u32 v{12+b}, s30, v1")
    POLL = f"buffer_load_dwordx3 v[100:102], v5, s[4:7], s28 offen {SC}"
    if PE: k(f"s_cmp_lg_u32 s3, 7\ns_cbranch_scc1 {n}_pe\n{POLL}\n{n}_pe:")
    k("s_waitcnt lgkmcnt(0)\ns_barrier")
    for b in range(4): k(f"ds_read_b128 {vr(Q+4*b)}, v{12+b} offset:{QL}")
    if not PE: k(f"s_cmp_lg_u32 s3, 7\ns_cbranch_scc1 {n}_pe\n{POLL}\n{n}_pe:")
    for i in range(64):
        k(f"v_mov_b32 v{O+i}, 0")
    for i in range(4):
        k(f"v_mov_b32 v{P+4+i}, 0\nv_mov_b32 v{Vb(1,1)+i}, 0\nv_mov_b32 v{8+i}, 0")
    k("s_waitcnt lgkmcnt(0)")
    for b in range(4):
        for r in range(4):
            k(f"v_dot2c_f32_bf16 v{8+b}, v{Q+4*b+r}, v{Q+4*b+r}")
    k(f"""
    s_cmp_lg_u32 s3, 7
    s_cbranch_scc1 {n}_np
    s_branch {n}_pc
    {n}_pl:
    {POLL}
    {n}_pc:
    s_sub_u32 s34, s34, 1
    s_waitcnt vmcnt(0)
    s_cbranch_scc1 {n}_pg
    v_max3_u32 v103, v100, v101, v102
    v_cmp_eq_u32 vcc, -1, v103
    s_nop 4
    s_cbranch_vccnz {n}_pl
    {n}_pg:
    """)
    k.stamp(6)
    k(f"""
    ds_write_b32 v2, v100 offset:{KM}
    s_waitcnt lgkmcnt(0)
    {n}_np:
    s_barrier
    ds_read_b32 v6, v2 offset:{KM}
    buffer_load_dwordx4 {vr(Kb(0))}, v1, s[4:7], s40 offen {SCK}
    buffer_load_dwordx4 {vr(Vb(0,0))}, v1, s[4:7], s41 offen {SCK}
    buffer_load_dwordx4 {vr(Vb(0,1))}, v1, s[4:7], s41 offen offset:1024 {SCK}
    s_add_u32 s40, s40, 1024
    s_add_u32 s41, s41, 2048
    s_waitcnt lgkmcnt(0)
    v_max_f32_dpp v6, v6, v6 quad_perm:[1,0,3,2] row_mask:0xf bank_mask:0xf
    s_nop 2
    v_max_f32_dpp v6, v6, v6 quad_perm:[2,3,0,1] row_mask:0xf bank_mask:0xf
    v_permlane32_swap_b32 v8, v9
    v_permlane32_swap_b32 v10, v11
    v_max_f32_dpp v6, v6, v6 row_half_mirror row_mask:0xf bank_mask:0xf
    v_add_f32 v8, v8, v9
    v_add_f32 v10, v10, v11
    v_max_f32_dpp v6, v6, v6 row_mirror row_mask:0xf bank_mask:0xf
    v_max_f32 v8, v8, v10
    s_nop 0
    v_readlane_b32 s30, v6, 0
    v_readlane_b32 s31, v6, 16
    v_readlane_b32 s32, v6, 32
    v_readlane_b32 s33, v6, 48
    s_max_u32 s30, s30, s31
    s_max_u32 s32, s32, s33
    s_max_u32 s30, s30, s32
    v_mul_f32 v8, s30, v8
    s_mov_b32 s31, {hex(f2u(THR*THR))}
    v_cmp_nge_f32 vcc, s31, v8
    s_mov_b32 s34, 8
    s_nop 3
    s_cbranch_vccnz {n}_slow
    """)
    def wload(n):
        return f"buffer_load_dwordx4 a[{4*n}:{4*n+3}], v1, s[4:7], s43 offen offset:{1024*(n&3)}" + ("\ns_add_u32 s53, s53, 8192\ns_and_b32 s53, s53, 0x7fff\ns_add_u32 s43, s52, s53" if n & 3 == 3 else "")
    def main_loop(slow):
        L = k.lab("loop")
        for i in range(4): k(f"v_mov_b32 v{S+28+i}, 0")
        if slow:
            for i in range(16): k(wload(i))
        k(f"s_waitcnt vmcnt(0)\n{MFMA} {vr(S,16)}, {vr(Kb(0))}, {vr(Q)}, 0\ns_nop 15\n.p2align 6\n{L}:")
        for BB in range(2 if slow else 16):
            B = BB & 1
            for t in range(4):
                Sc, Sn = S + 16*(t & 1), S + 16*((t+1) & 1)
                tn, Bn = (t+1) & 3, (B ^ 1 if t == 3 else B)
                tp, Bp = (t-1) & 3, (B ^ 1 if t == 0 else B)
                def e(i):
                    if slow:
                        k(f"v_sub_f32 v{Sc+i}, v{Sc+i}, v{M+t}")
                    k(f"v_exp_f32 v{Sc+i}, v{Sc+i}")
                def c(p): k(f"v_cvt_pk_bf16_f32 v{P+p}, v{Sc+2*p}, v{Sc+2*p+1}")
                def cp(p): k(f"v_cvt_pk_bf16_f32 v{P+p}, v{Sn+2*p}, v{Sn+2*p+1}")
                if not slow and 4*BB + t == PSW:
                    k(f"s_cmp_lt_u32 s3, 4\ns_cbranch_scc1 {L}x\ns_setprio 0\n{L}x:")
                pf = not slow and 4 <= BB < 10
                e(0); e(1); cp(6); e(2); cp(7)
                if not (BB == 15 and t == 3):
                    if t == 3:
                        k(f"s_waitcnt vmcnt({0 if slow else 1 + pf})")
                    k(f"{MFMA} {vr(Sn,16)}, {vr(Kb(Bn))}, {vr(Q+4*tn)}, 0")
                e(3); e(4); c(0)
                k(f"{MFMA} {vr(O+16*tp,16)}, {vr(Vb(Bp,1))}, {vr(P+4)}, {vr(O+16*tp,16)}")
                if t == 0:
                    if BB < 15:
                        k(f"""
                        buffer_load_dwordx4 {vr(Kb(B^1))}, v1, s[4:7], s40 offen offset:{1024*B} {SCK}
                        buffer_load_dwordx4 {vr(Vb(B^1,0))}, v1, s[4:7], s41 offen offset:{2048*B} {SCK}
                        buffer_load_dwordx4 {vr(Vb(B^1,1))}, v1, s[4:7], s41 offen offset:{2048*B+1024} {SCK}
                        """)
                    if not slow: k(wload(BB))
                    if pf: k(f"buffer_load_dwordx4 {vr(164)}, v1, s[8:11], s42 offen\ns_add_u32 s42, s42, 0x40000")
                e(5); e(6); c(1); e(7); e(8); c(2); e(9); e(10); c(3); e(11); e(12)
                k(f"{MFMA} {vr(O+16*t,16)}, {vr(Vb(B,0))}, {vr(P)}, {vr(O+16*t,16)}")
                c(4); e(13); e(14); c(5); e(15)
            if B: k("s_add_u32 s40, s40, 2048\ns_add_u32 s41, s41, 4096")
        if slow:
            k(f"s_sub_u32 s34, s34, 1\ns_cmp_lg_u32 s34, 0\ns_cbranch_scc1 {L}")
        k(f"""
        s_nop 0
        v_cvt_pk_bf16_f32 v{P+6}, v{S+28}, v{S+29}
        v_cvt_pk_bf16_f32 v{P+7}, v{S+30}, v{S+31}
        s_nop 1
        {MFMA} {vr(O+48,16)}, {vr(Vb(1,1))}, {vr(P+4)}, {vr(O+48,16)}
        """)
    k.stamp(1)
    main_loop(False)
    k.stamp(2)
    k(f"""
    {n}_fin:
    s_cmp_lt_u32 s3, 4
    s_cbranch_scc1 {n}_fp
    s_setprio 2
    {n}_fp:
    s_lshl_b32 s18, s18, 2
    s_lshl_b32 s44, s16, 15
    s_lshl_b32 s45, s38, 11
    s_add_u32 s45, s45, s44
    s_add_u32 s46, s45, {X0P}
    s_cmp_lg_u32 s39, 0
    s_cselect_b32 s46, 0x7ff00000, s46
    buffer_load_dwordx4 {vr(168)}, v1, s[4:7], s46 offen
    buffer_load_dwordx4 {vr(172)}, v1, s[4:7], s46 offen offset:1024
    s_add_u32 s44, s44, {OP}
    s_add_u32 s47, s22, s19
    s_lshl_b32 s47, s47, 10
    s_and_b32 s47, s47, 0x7fff
    s_nop 4
    """)
    for b in (1, 2, 3):
        k(f"""
        s_xor_b32 s30, s19, {b}
        s_add_u32 s30, s30, s18
        s_mul_i32 s30, s30, 6912
        v_add_u32 v6, s30, v1
        v_add_u32 v7, s30, v2
        ds_write_b128 v6, {vr(O+16*b)} offset:{(b-1)*2304}
        ds_write_b128 v6, {vr(O+16*b+4)} offset:{(b-1)*2304+1024}
        ds_write_b32 v7, v{O+16*b+8} offset:{(b-1)*2304+2048}
        """)
    k(f"""
    s_add_u32 s30, s19, s18
    s_mul_i32 s30, s30, 6912
    v_add_u32 v6, s30, v1
    v_add_u32 v7, s30, v2
    s_waitcnt lgkmcnt(0)
    s_barrier
    """)
    k.stamp(3)
    for s in range(3):
        k(f"""
        ds_read_b128 {vr(O+16+16*s)}, v6 offset:{s*2304}
        ds_read_b128 {vr(O+20+16*s)}, v6 offset:{s*2304+1024}
        ds_read_b32 v{O+24+16*s}, v7 offset:{s*2304+2048}
        """)
    for s in range(3):
        k(f"s_waitcnt lgkmcnt({6-3*s})")
        for i in (8, 0, 1, 2, 3, 4, 5, 6, 7):
            k(f"v_add_f32 v{O+i}, v{O+i}, v{O+16+16*s+i}")
    k(f"v_rcp_f32 v{O+8}, v{O+8}\ns_add_u32 s24, s24, {OP-QP}\ns_nop 0")
    for i in range(8):
        k(f"v_mul_f32 v{O+i}, v{O+i}, v{O+8}")
    for p in range(4):
        k(f"v_cvt_pk_bf16_f32 v{P+p}, v{O+2*p}, v{O+2*p+1}")
    k(f"""
    s_and_b32 s30, s47, 0x1fff
    s_add_u32 s30, s30, {OL}
    v_add_u32 v8, s30, v1
    s_lshl_b32 s30, s39, 12
    s_add_u32 s30, s30, {OL}
    v_add_u32 v10, s30, v1
    s_mov_b32 s34, 0x1000
    """)
    for p in range(4):
        k(f"v_min_u32 v{P+p}, -2, v{P+p}")
    k(f"""
    buffer_store_dwordx4 {vr(P)}, v1, s[4:7], s24 offen {SC}
    ds_write_b128 v8, {vr(P)}
    s_waitcnt vmcnt(1)
    """)
    k.stamp(4)
    for i in range(16):
        k(f"v_lshlrev_b32 v{O+i}, 16, v{168+i//2}" if i % 2 == 0 else f"v_and_b32 v{O+i}, 0xffff0000, v{168+i//2}")
    k("s_waitcnt lgkmcnt(0)\ns_barrier")
    for i in range(4):
        k(f"ds_read_b128 {vr(S+4*i)}, v10 offset:{1024*i}")
    for r in range(3):
        k(f"s_add_u32 s47, s47, 8192\ns_and_b32 s47, s47, 0x7fff\ns_add_u32 s{48+r}, s47, s44")
    k(f"""
    v_and_b32 v11, 31, v3
    v_lshrrev_b32 v9, 5, v3
    v_lshlrev_b32 v11, 4, v11
    v_lshl_add_u32 v11, v9, 2, v11              ; o*16 + hf*4
    s_and_b32 s30, s3, 3
    s_lshl_b32 s30, s30, 12
    v_add_u32 v9, s30, v1
    s_lshl_b32 s46, s16, 12
    s_bfe_u32 s47, s38, 0x20001
    s_lshl_b32 s47, s47, 10
    s_add_u32 s46, s46, s47
    s_lshr_b32 s47, s38, 3
    s_lshl_b32 s47, s47, 9
    s_add_u32 s46, s46, s47
    s_and_b32 s47, s38, 1
    s_lshl_b32 s47, s47, 3
    s_add_u32 s46, s46, s47
    s_add_u32 s46, s46, {STB}
    s_add_u32 s45, s45, {X1P}
    """)
    for i in range(4):
        k(f"s_waitcnt lgkmcnt({3-i})\n{MFMA} {vr(O,16)}, a[{4*i}:{4*i+3}], {vr(S+4*i)}, {vr(O,16)}")
    k("s_waitcnt vmcnt(0)")
    k(f"{n}_poll:")
    for r in range(3):
        k(f"buffer_load_dwordx4 {vr(Q+4*r)}, v1, s[4:7], s{48+r} offen {SC}")
    k(f"""
    s_sub_u32 s34, s34, 1
    s_cbranch_scc1 {n}_got
    s_waitcnt vmcnt(0)
    v_max3_u32 v6, v{Q}, v{Q+1}, v{Q+2}
    v_max3_u32 v7, v{Q+3}, v{Q+4}, v{Q+5}
    v_max3_u32 v6, v6, v{Q+6}, v{Q+7}
    v_max3_u32 v7, v7, v{Q+8}, v{Q+9}
    v_max3_u32 v6, v6, v{Q+10}, v{Q+11}
    v_max_u32 v6, v6, v7
    v_cmp_eq_u32 vcc, -1, v6
    s_nop 4
    s_cbranch_vccnz {n}_poll
    {n}_got:
    s_waitcnt vmcnt(0)
    """)

    for r in range(3):
        k(f"ds_write_b128 v8, {vr(Q+4*r)} offset:{8192*(r+1)}")
    k("s_waitcnt lgkmcnt(0)\ns_barrier")
    k.stamp(5)
    for i in range(4, 16):
        k(f"ds_read_b128 {vr(S+4*i)}, v10 offset:{8192*(i//4) + 1024*(i&3)}")
    for i in range(4, 16):
        k(f"s_waitcnt lgkmcnt({15-i})\n{MFMA} {vr(O,16)}, a[{4*i}:{4*i+3}], {vr(S+4*i)}, {vr(O,16)}")
    k(f"s_cmp_eq_u32 s39, 0\ns_cbranch_scc1 {n}_red\ns_nop 15")
    for q in range(4):
        k(f"ds_write_b128 v9, {vr(O+4*q)} offset:{1024*q}")
    k(f"s_waitcnt lgkmcnt(0)\ns_barrier\ns_endpgm\n{n}_red:")
    k("s_barrier")
    for q in range(4):
        k(f"ds_read_b128 {vr(O+16+4*q)}, v9 offset:{1024*q}")
    for q in range(4):
        k(f"s_waitcnt lgkmcnt({3-q})")
        for i in range(4*q, 4*q+4):
            k(f"v_add_f32 v{O+i}, v{O+i}, v{O+16+i}")
    for p in range(8):
        k(f"v_cvt_pk_bf16_f32 v{P+p}, v{O+2*p}, v{O+2*p+1}")
    k(f"buffer_store_dwordx4 {vr(P)}, v1, s[4:7], s45 offen")
    k(f"buffer_store_dwordx4 {vr(P+4)}, v1, s[4:7], s45 offen offset:1024")
    emit_stats_out(k, O, 12, 13, 11, 46)
    k(f"""
    {n}_end:
    s_endpgm
    {n}_slow:
    s_mov_b32 s35, {KP}
    s_mov_b32 s36, 64
    """)
    for t in range(4):
        k(f"v_mov_b32 v{M+t}, 0xff800000")
    L = k.lab("mx")
    k(f"{L}:\nbuffer_load_dwordx4 {vr(Kb(1))}, v1, s[4:7], s35 offen {SC}\ns_waitcnt vmcnt(0)")
    for h in range(2):
        for t in range(2):
            k(f"{MFMA} {vr(S+16*t,16)}, {vr(Kb(1))}, {vr(Q+8*h+4*t)}, 0")
        k("s_nop 15\ns_nop 3")
        for t in range(2):
            for i in range(8):
                k(f"v_max3_f32 v{M+2*h+t}, v{M+2*h+t}, v{S+16*t+2*i}, v{S+16*t+2*i+1}")
    k(f"""
    s_add_u32 s35, s35, 1024
    s_sub_u32 s36, s36, 1
    s_cmp_lg_u32 s36, 0
    s_cbranch_scc1 {L}
    """)
    for t in range(4):
        k(f"v_mov_b32 v{8+t}, v{M+t}")
    k("s_nop 1")
    for t in range(4):
        k(f"v_permlane32_swap_b32 v{8+t}, v{M+t}")
    k("s_nop 1")
    for t in range(4):
        k(f"v_max_f32 v{M+t}, v{M+t}, v{8+t}")
    main_loop(True)
    k(f"s_branch {n}_fin")
    return k
```

```python
from gen_common import *

def gen_prep():
    k = K("prep_kernel", 0, 512, 4096, 64)
    k(f"""
    s_load_dwordx2 s[20:21], s[0:1], {A_WS}
    s_load_dwordx4 s[24:27], s[0:1], {A_X}      ; x, wq
    s_load_dwordx4 s[28:31], s[0:1], {A_WK}
    s_load_dwordx2 s[32:33], s[0:1], {A_WO}
    s_load_dwordx4 s[36:39], s[0:1], {A_W1}     ; w1, b1
    s_load_dwordx2 s[34:35], s[0:1], {A_W2}
    v_lshrrev_b32 v1, 6, v0
    v_and_b32 v2, 15, v0
    v_readfirstlane_b32 s3, v1
    v_bfe_u32 v3, v0, 4, 1                      ; hf
    v_bfe_u32 v4, v0, 5, 1
    v_lshlrev_b32 v5, 4, v4
    v_lshl_add_u32 v5, v3, 2, v5
    v_lshlrev_b32 v7, 10, v4
    v_lshl_add_u32 v7, v3, 9, v7
    v_lshl_add_u32 v7, v2, 5, v7
    s_mov_b32 s18, 0x05040100
    s_mov_b32 s19, 0x07060302
    s_mov_b32 s23, 0x3f803f80
    s_mov_b32 s22, 0
    s_waitcnt lgkmcnt(0)
    """)
    k.srd(4, 20, WS_END)
    base = 0
    LP, LX, LE, LKV, LT = k.lab("pack"), k.lab("xp"), k.lab("end"), k.lab("kv"), k.lab("tr")
    def wjob(cnt, ptr, Krows, N, dst, wx=None, nbias=0, tgt=None):
        nonlocal base
        nx = k.lab("n")
        st = 2*N
        A, B, C, E, ds, dd = (64, 64*st, 32768, 4096, 32*st, 2048) if Krows == 512 else (32*st, 128, 2048, 2*86*1024, 64, 86*1024)
        k(f"s_cmp_ge_u32 s2, {base+cnt}\ns_cbranch_scc1 {nx}")
        k.srd(8, ptr, Krows*st)
        k.srd(60, 38, nbias)
        k(f"""
        s_sub_u32 s12, s2, {base}
        s_mov_b32 s13, {st}
        s_mul_i32 s14, s12, {A}
        s_mul_i32 s15, s3, {B}
        s_add_u32 s14, s14, s15
        s_mul_i32 s16, s12, {C}
        s_mul_i32 s15, s3, {E}
        s_add_u32 s16, s16, s15
        s_add_u32 s16, s16, {dst}
        s_add_u32 s17, s16, {dd}
        s_mov_b32 s15, {ds}
        """)
        if wx is not None:
            k(f"s_lshl_b32 s22, s12, 10\ns_add_u32 s22, s22, {WX + wx*1024}")
        k(f"s_branch {tgt or LP}\n{nx}:")
        base += cnt
    wjob(43, 36, 512, 1376, W1_P, 17, 2752)
    wjob(16, 26, 512, 512, WQ_P, 0)
    wjob(1, 28, 512, 16, WKV_P, 16, tgt=LKV)
    xbase = base
    k(f"s_cmp_lt_u32 s2, {base+64}\ns_cbranch_scc1 {LX}")
    base += 64
    wjob(16, 32, 512, 512, WO_P)
    wjob(43, 34, 1376, 512, W2_P)
    k.grid = base
    k(f"{LE}:\ns_endpgm")
    def offs():
        for j in range(8):
            k(f"s_mul_i32 s{40+j}, s13, {(j & 3) + 8*(j >> 2)}\ns_add_u32 s{40+j}, s{40+j}, s14\ns_add_u32 s{48+j}, s{40+j}, s15")
    def loads():
        for j in range(16):
            k(f"buffer_load_dword v{16+j}, v6, s[8:11], s{40+j} offen")
    k(f"{LKV}:\nv_and_b32 v6, 7, v2\nv_lshlrev_b32 v6, 2, v6\nv_lshl_add_u32 v6, v5, 5, v6")
    offs()
    k("s_mov_b32 exec_lo, 0x00ff00ff\ns_mov_b32 exec_hi, 0x00ff00ff")
    loads()
    k("s_not_b64 exec, exec\ns_mov_b32 s8, s30\ns_mov_b32 s9, s31")
    loads()
    k(f"s_mov_b64 exec, -1\ns_branch {LT}")
    k(f"{LP}:\nv_mul_lo_u32 v6, v5, s13\nv_lshl_add_u32 v6, v2, 2, v6")
    offs()
    loads()
    k(f"{LT}:\nv_mov_b32 v8, 0\nv_mov_b32 v9, 0")
    for i in range(2):
        k(f"s_waitcnt vmcnt({8 if i == 0 else 2})")
        for c in range(2):
            for p in range(4):
                k(f"v_perm_b32 v{32+8*i+4*c+p}, v{16+8*i+2*p+1}, v{16+8*i+2*p}, s{18+c}")
            k(f"buffer_store_dwordx4 {vr(32+8*i+4*c)}, v7, s[4:7], s{16+i} offen offset:{16*c}")
    k(f"s_cmp_eq_u32 s22, 0\ns_cbranch_scc1 {LE}")
    for i in range(2):
        for p in range(4):
            for c in range(2):
                k(f"v_dot2c_f32_bf16 v{8+c}, s23, v{32+8*i+4*c+p}")
    k(f"""
    v_lshlrev_b32 v10, 3, v0
    v_and_b32 v11, 31, v0
    s_lshl_b32 s14, s12, 6
    v_lshlrev_b32 v12, 1, v11
    ds_write_b64 v10, v[8:9]
    buffer_load_ushort v50, v12, s[60:63], s14 offen
    v_lshlrev_b32 v10, 11, v4
    v_lshl_add_u32 v10, v11, 2, v10
    s_waitcnt lgkmcnt(0)
    s_barrier
    s_cmp_lg_u32 s3, 0
    s_cbranch_scc1 {LE}
    """)
    for r in range(16):
        k(f"ds_read_b32 v{16+r}, v10 offset:{128*r}")
    k("v_lshlrev_b32 v3, 4, v0\nv_cmp_eq_u32 vcc, 0, v4\ns_waitcnt lgkmcnt(0)")
    for st in (8, 4, 2, 1):
        for r in range(st):
            k(f"v_add_f32 v{16+r}, v{16+r}, v{16+r+st}")
    k(f"""
    v_mov_b32 v17, v16
    s_nop 1
    v_permlane32_swap_b32 v16, v17
    s_nop 1
    v_add_f32 v16, v16, v17
    v_cvt_pk_bf16_f32 v48, v16, v16
    v_and_b32 v49, 0xffff0000, v48
    v_sub_f32 v49, v16, v49
    v_cvt_pk_bf16_f32 v49, v49, v49
    v_mov_b32 v51, 0
    s_waitcnt vmcnt(0)
    v_lshl_or_b32 v50, v50, 16, v50
    v_cndmask_b32 v48, 0, v48, vcc
    v_cndmask_b32 v49, 0, v49, vcc
    v_cndmask_b32 v50, 0, v50, vcc
    buffer_store_dwordx4 v[48:51], v3, s[4:7], s22 offen
    s_endpgm
    """)
    k(f"{LX}:")
    k.srd(8, 24, 2048*512*2)
    k(f"""
    s_sub_u32 s13, s2, {xbase}
    s_lshr_b32 s13, s13, 3
    s_and_b32 s14, s2, 7
    s_lshl_b32 s14, s14, 3
    s_add_u32 s13, s13, s14                     ; tb
    s_lshr_b32 s14, s3, 2
    v_and_b32 v1, 7, v0
    s_and_b32 s15, s3, 3
    s_lshl_b32 s15, s15, 3
    v_add_u32 v1, s15, v1
    v_bfe_u32 v2, v0, 3, 3
    v_lshlrev_b32 v3, 10, v1
    v_lshl_add_u32 v3, v2, 5, v3
    s_lshl_b32 s16, s13, 15
    s_lshl_b32 s17, s14, 9
    s_add_u32 s16, s16, s17
    buffer_load_dwordx4 v[16:19], v3, s[8:11], s16 offen
    buffer_load_dwordx4 v[20:23], v3, s[8:11], s16 offen offset:16
    buffer_load_dwordx4 v[24:27], v3, s[8:11], s16 offen offset:256
    buffer_load_dwordx4 v[28:31], v3, s[8:11], s16 offen offset:272
    v_lshlrev_b32 v4, 10, v2
    v_lshl_add_u32 v4, v1, 4, v4
    s_lshl_b32 s17, s13, 15
    s_lshl_b32 s18, s14, 14
    s_add_u32 s17, s17, s18
    s_add_u32 s17, s17, {X0P}
    s_add_u32 s18, s17, 8192
    v_mov_b32 v32, 0
    v_mov_b32 v33, 0
    v_lshrrev_b32 v5, 1, v2
    v_lshlrev_b32 v5, 10, v5
    v_lshl_add_u32 v5, v1, 4, v5
    v_and_b32 v6, 1, v2
    v_lshl_add_u32 v5, v6, 3, v5
    s_lshl_b32 s15, s13, 12
    s_lshl_b32 s16, s14, 9
    s_add_u32 s15, s15, s16
    s_add_u32 s15, s15, {STA}
    v_mov_b32 v36, -1
    v_mov_b32 v37, -1
    v_mov_b32 v38, -1
    v_mov_b32 v39, -1
    v_lshlrev_b32 v7, 4, v0
    v_and_b32 v8, 0x70, v7
    s_lshl_b32 s40, s13, 15
    s_add_u32 s40, s40, {OP}
    s_add_u32 s41, s40, 8192
    s_add_u32 s42, s40, 16384
    s_add_u32 s43, s40, 24576
    s_lshl_b32 s44, s13, 7
    s_add_u32 s44, s44, {KMAX}
    s_cmp_lg_u32 s3, 0
    s_cselect_b32 s44, 0x7ff00000, s44
    s_waitcnt vmcnt(2)
    v_swap_b32 v18, v20
    v_swap_b32 v19, v21
    buffer_store_dwordx4 v[16:19], v4, s[4:7], s17 offen
    buffer_store_dwordx4 v[20:23], v4, s[4:7], s17 offen offset:512
    s_waitcnt vmcnt(2)
    v_swap_b32 v26, v28
    v_swap_b32 v27, v29
    buffer_store_dwordx4 v[24:27], v4, s[4:7], s18 offen
    buffer_store_dwordx4 v[28:31], v4, s[4:7], s18 offen offset:512
    buffer_store_dwordx4 v[36:39], v7, s[4:7], s40 offen sc1
    buffer_store_dwordx4 v[36:39], v7, s[4:7], s41 offen sc1
    buffer_store_dwordx4 v[36:39], v7, s[4:7], s42 offen sc1
    buffer_store_dwordx4 v[36:39], v7, s[4:7], s43 offen sc1
    buffer_store_dwordx4 v[36:39], v8, s[4:7], s44 offen sc1
    """)
    for r in range(16, 32):
        k(f"v_dot2c_f32_bf16 v32, s23, v{r}\nv_dot2c_f32_bf16 v33, v{r}, v{r}")
    k("""
    s_nop 3
    buffer_store_dwordx2 v[32:33], v5, s[4:7], s15 offen
    s_endpgm
    """)
    return k
```

```python
from gen_common import *
import math
QSCALE = 0.25*math.log2(math.e)
C1 = -2*math.sqrt(2/math.pi)*math.log2(math.e)
C2 = C1*0.044715
D, R = int(os.environ.get('RD', 3)), 6
SI = int(os.environ.get('SI', 3))
PF = int(os.environ.get('PF', 1))

def gen_ring(name, kind):
    final = kind == 'f2'
    f1 = kind == 'f1'
    XP, WP, nkb = {'q': (X0P, WQ_P, 32), 'wo': (OP, WO_P, 32), 'f2': (HP, W2_P, 86), 'f1': (X1P, W1_P, 32)}[kind]
    grid = 240 if f1 else 256
    lds = {'q': R*16384 + 4096, 'wo': R*16384, 'f2': R*16384, 'f1': R*12288}[kind]
    k = K(name, grid, 256, lds, 208)
    if f1: k.agpr = 96
    k(f"""
    s_cmp_ge_u32 s2, {grid}
    s_cbranch_scc1 {name}_end
    s_load_dwordx2 s[20:21], s[0:1], {A_WS}
    """)
    if kind == 'f2': k(f"s_load_dwordx4 s[24:27], s[0:1], {A_B2}")
    if f1: k(f"s_load_dwordx2 s[24:25], s[0:1], {A_B1}")
    k(f"""
    v_lshrrev_b32 v2, 6, v0
    v_and_b32 v3, 63, v0
    v_readfirstlane_b32 s3, v2                  ; wave
    v_lshlrev_b32 v1, 4, v3                     ; lane*16
    v_lshrrev_b32 v4, 5, v3                     ; hf
    v_and_b32 v5, 31, v3                        ; o
    s_and_b32 s16, s2, 7
    s_lshl_b32 s35, s3, 12
    s_lshl_b32 s36, s3, 10
    """)
    if f1:
        k(f"""
        s_lshl_b32 s16, s16, 1
        s_bfe_u32 s18, s2, 0x10003
        s_add_u32 s16, s16, s18
        s_lshl_b32 s16, s16, 2
        s_add_u32 s16, s16, s3
        s_lshr_b32 s17, s2, 4                   ; n group
        s_lshl_b32 s18, s18, 2
        s_add_u32 s34, s17, s18
        s_and_b32 s34, s34, 7
        s_lshl_b32 s34, s34, 12                 ; rotation
        s_mul_i32 s17, s17, 3                   ; nb0
        s_lshl_b32 s40, s16, 15
        s_add_u32 s40, s40, {XP}
        s_lshl_b32 s41, s17, 15
        s_add_u32 s41, s41, s36
        s_add_u32 s41, s41, {WP}
        v_mov_b32 v6, v1
        v_add_u32 v7, {3*12288}, v1
        """)
    else:
        k(f"""
        s_lshr_b32 s19, s2, 3                   ; local
        s_and_b32 s18, s19, 3
        s_lshl_b32 s16, s16, 2
        s_add_u32 s16, s16, s18
        s_lshr_b32 s17, s19, 2                  ; n pair
        """)
        if nkb == 32:
            k("s_lshl_b32 s18, s18, 1\ns_add_u32 s34, s17, s18\ns_and_b32 s34, s34, 7")
        else:
            k("s_mul_i32 s34, s17, 21\ns_lshr_b32 s34, s34, 3\ns_mul_i32 s18, s18, 5\ns_add_u32 s34, s34, s18\ns_sub_u32 s18, s34, 21\ns_cmp_ge_u32 s34, 21\ns_cselect_b32 s34, s18, s34")
        k(f"""
        s_lshl_b32 s34, s34, 12                 ; rotation
        s_and_b32 s18, s3, 1
        s_lshr_b32 s19, s3, 1
        s_mov_b32 s38, s17
        s_cmp_lt_u32 s3, 2
        s_cselect_b32 s40, s16, s17
        s_mov_b32 s41, {WP}
        s_cselect_b32 s41, {XP}, s41
        s_lshl_b32 s40, s40, 1
        s_add_u32 s40, s40, s18
        s_mul_i32 s40, s40, {nkb*1024}
        s_add_u32 s40, s40, s41
        s_lshl_b32 s16, s16, 1
        s_add_u32 s16, s16, s18
        s_lshl_b32 s17, s17, 1
        s_add_u32 s17, s17, s19
        s_lshl_b32 s18, s18, 12
        s_lshl_b32 s19, s19, 12
        s_add_u32 s19, s19, 8192
        v_add_u32 v6, s18, v1
        v_add_u32 v8, s19, v1
        s_lshl_b32 s44, s16, 15
        s_lshl_b32 s45, s17, 11
        s_add_u32 s44, s44, s45
        """)
    k("s_waitcnt lgkmcnt(0)")
    k.stamp(0)
    k.srd(4, 20, WS_END)
    if kind == 'f2':
        k.srd(8, 24, 1024)
        if final: k.srd(12, 26, 2048*1024)
    if f1: k.srd(8, 24, 2752)
    if kind == 'q':
        k(f"s_cmp_ge_u32 s38, 4\ns_cbranch_scc1 {name}_v")
        body(k, kind, nkb, final, 'k')
        k(f"{name}_end:\ns_endpgm\n{name}_v:")
        body(k, kind, nkb, final, 'v')
        k("s_endpgm")
    else:
        body(k, kind, nkb, final, False)
        k(f"{name}_end:\ns_endpgm")
    return k

def body(k, kind, nkb, final, kv):
    f1 = kind == 'f1'
    SLOT = 12288 if f1 else 16384
    KVB = R*SLOT
    nfull = nkb//4
    nst = (nkb + 3)//4
    G = lambda s: 4 if s < nfull else nkb - 4*nfull
    nr = 3 if (f1 or kv) else 2
    RB = 64 if (f1 or kv) else 48
    E = 160
    ar = lambda a: f"a[{a}:{a+3}]"
    seq = []
    last = {}
    def wait_for(tag):
        k(f"s_waitcnt vmcnt({len(seq)-1-seq.index(tag)})")
    if not f1:
        k(f"v_add_u32 v7, {3*SLOT}, v6\nv_add_u32 v9, {3*SLOT}, v8")
    if kv:
        k(f"""
        v_and_b32 v15, 3, v3
        v_lshrrev_b32 v2, 2, v3
        v_lshlrev_b32 v2, 9, v2
        v_lshl_add_u32 v2, v15, 4, v2           ; (l>>3)*1024 + hf'*512 + (l&3)*16
        s_lshl_b32 s41, s38, 6
        s_lshl_b32 s42, s3, 13
        s_add_u32 s42, s42, s41
        s_add_u32 m0, s36, {KVB}
        s_add_u32 s42, s42, {WKV_P}
        buffer_load_dwordx4 v2, s[4:7], s42 offen lds
        v_lshlrev_b32 v15, 4, v15
        v_lshl_add_u32 v3, v4, 9, v15           ; hf*512 + (l&3)*16
        v_lshl_add_u32 v15, v4, 6, v15
        v_add_u32 v15, {KVB}, v15
        s_lshr_b32 s39, s34, 3
        s_lshr_b32 s52, s3, 1
        s_lshl_b32 s53, s52, 8
        s_lshl_b32 s52, s52, 11
        v_add_u32 v15, s53, v15
        """)
        for j in range(4):
            k(f"v_subrev_u32 v{200+j}, s52, v{6+j}\nv_add_u32 v{6+j}, s52, v{6+j}")
        seq.append('kvw')
    def issue(s):
        sb = (s % R)*SLOT
        rot = "s34" if s < nfull else str(nfull*4096)
        C = []
        if f1:
            for j in range(3):
                C.append((f"s_add_u32 s43, s41, {rot}\n" if j == 0 else "") + f"s_add_u32 m0, s36, {sb + j*4096}\ns_add_u32 s42, s43, {j*32768}\nbuffer_load_dwordx4 v1, s[4:7], s42 offen lds")
            for i in range(4):
                C.append((f"s_add_u32 s42, s40, {rot}\n" if i == 0 else "") + f"buffer_load_dwordx4 {ar(16*(s%R)+4*i)}, v1, s[4:7], s42 offen offset:{1024*i}")
        else:
            for i in range(G(s)):
                C.append((f"s_add_u32 m0, s35, {sb}\ns_add_u32 s42, s40, {rot}\n" if i == 0 else "") + f"buffer_load_dwordx4 v1, s[4:7], s42 offen offset:{1024*i} lds")
        if s < nfull - 1:
            C[-1] += "\ns_add_u32 s34, s34, 4096\n" + ("s_and_b32 s34, s34, 0x7fff" if nkb == 32 else f"s_cmp_eq_u32 s34, {nfull*4096}\ns_cselect_b32 s34, 0, s34")
        for i in range(len(C)): seq.append((s, i))
        last[s] = seq[-1]
        return C
    def issue_epi():
        def ld(n, reg, voff, srd, soff, off):
            k(f"buffer_load_dword{'x%d' % n} {vr(reg, n)}, v{voff}, {srd}, s{soff} offen offset:{off}"); seq.append(('e', len(seq)))
        if kind in ('q', 'f1'):
            k(f"""
            s_lshl_b32 s46, s16, 12
            s_add_u32 s46, s46, {STA if kind == 'q' else STB}
            s_lshl_b32 s47, s17, 10
            s_add_u32 s47, s47, {WX + (17*1024 if f1 else 0)}
            """)
            for q in range(4): ld(4, E+4*q, 1, "s[4:7]", 46, 1024*q)
            for j in range(3 if f1 else 1): ld(4, E+16+4*j, 1, "s[4:7]", 47, 1024*j)
            if kv:
                k(f"s_add_u32 s48, s41, {WX + 16*1024}\ns_cmp_ge_u32 s3, 2\ns_cselect_b32 s48, 0x7ff00000, s48")
                ld(4, E+20, 3, "s[4:7]", 48, 0)
        else:
            k(f"s_add_u32 s45, s44, {X0P if kind == 'wo' else X1P}")
            for q in range(2): ld(4, E+4*q, 1, "s[4:7]", 45, 1024*q)
        if kind == 'f2':
            k(f"v_lshlrev_b32 v3, 3, v4\ns_lshl_b32 s47, s17, 6")
            for q in range(4): ld(2, E+8+2*q, 3, "s[8:11]", 47, 16*q)
        last['e'] = seq[-1]
    def init_acc():
        wait_for(last['e'])
        unp = lambda d, s, i: (f"v_lshlrev_b32 v{d}, 16, v{s+i//2}" if i % 2 == 0 else f"v_and_b32 v{d}, 0xffff0000, v{s+i//2}")
        if kind in ('q', 'f1'):
            emit_stats(k, E, 10, 11, 12, 13)
            B = E + 28
            k(f"""
            v_mul_f32 v12, v13, v11             ; sqrt(var+eps)
            v_cvt_pk_bf16_f32 v2, -v10, -v10
            v_cvt_pk_bf16_f32 v3, v12, v12
            v_cvt_pk_bf16_f32 v13, v11, v11
            v_and_b32 v2, 0xffff0000, v2
            v_and_b32 v3, 0xffff0000, v3
            v_and_b32 v13, 0xffff0000, v13
            v_sub_f32_e64 v2, -v10, v2
            v_sub_f32 v3, v12, v3
            v_sub_f32 v13, v11, v13
            v_cvt_pk_bf16_f32 v{B}, -v10, v2
            v_cvt_pk_bf16_f32 v{B+1}, -v10, v2
            v_cvt_pk_bf16_f32 v{B+2}, v12, v3
            v_cvt_pk_bf16_f32 v{B+3}, v11, v13
            s_nop 1
            """)
            for j in range(3 if f1 else 1):
                k(f"{MFMA} {vr(16+16*j,16)}, {vr(E+16+4*j)}, {vr(B)}, {vr(16+16*j,16)}")
            if kv == 'k': k(f"{MFMA} {vr(32,16)}, {vr(E+20)}, {vr(B)}, {vr(32,16)}")
            if kv == 'v':
                k(f"""
                {MFMA} {vr(32,16)}, {vr(B)}, {vr(E+20)}, {vr(32,16)}
                v_cmp_eq_u32 vcc, 0, v4
                v_mov_b32 v{E+24}, 0
                v_mov_b32 v{E+25}, 0
                v_mov_b32 v{E+26}, 0
                v_mov_b32 v{E+27}, 0x3f803f80
                v_cndmask_b32 v{E+27}, 0, v{E+27}, vcc
                s_nop 1
                {MFMA} {vr(48,16)}, {vr(B)}, {vr(E+24)}, 0
                """)
        else:
            for i in range(16):
                k(unp(E+16+i, E, i))
            if kind == 'f2':
                for i in range(16):
                    k(unp(2+i % 2, E+8, i)); k(f"v_add_f32 v{E+16+i}, v{E+16+i}, v{2+i%2}")
    def reads(s):
        h = 1 if (s % R) >= 3 else 0
        so = ((s % R) % 3)*SLOT
        b = RB + (s & 1)*16*nr
        Rd = []
        for i in range(G(s)):
            if f1:
                for j in range(3):
                    Rd.append((i, f"ds_read_b128 {vr(b+16*j+4*i)}, v{6+h} offset:{so+4096*j+1024*i}"))
            else:
                for j, a in enumerate((6, 8)):
                    if kv and i >= 2: a += 194
                    Rd.append((i, f"ds_read_b128 {vr(b+16*j+4*i)}, v{a+h} offset:{so+1024*i}"))
                if kv and i < 2:
                    Rd.append((i, ("v_add_u32 v14, s39, v15\ns_add_u32 s39, s39, 512\ns_and_b32 s39, s39, 0xfff\n" if i == 0 else "") + f"ds_read_b128 {vr(b+32+4*i)}, v14 offset:{128*i}"))
        return Rd
    def mfmas(s):
        b = RB + (s & 1)*16*nr
        M = []
        for i in range(G(s)):
            c = lambda a: ("0" if s == 0 and i == 0 else vr(a, 16))
            if f1:
                for j in range(3):
                    M.append((i, f"{MFMA} {vr(16+16*j,16)}, {vr(b+16*j+4*i)}, {ar(16*(s%R)+4*i)}, {c(16+16*j)}"))
            else:
                M.append((i, f"{MFMA} {vr(16,16)}, {vr(b+16+4*i)}, {vr(b+4*i)}, {c(16)}"))
                if kv == 'k' and i < 2: M.append((i, f"{MFMA} {vr(32,16)}, {vr(b+32+4*i)}, {vr(b+4*i)}, {c(32)}"))
                if kv == 'v' and i < 2: M.append((i, f"{MFMA} {vr(32,16)}, {vr(b+4*i)}, {vr(b+32+4*i)}, {c(32)}"))
        return M
    npf = [0]
    def prefetch(n):
        C = []
        for i in range(n):
            C.append(f"buffer_load_dwordx4 {vr(204)}, v1, s[12:15], s48 offen\ns_add_u32 s48, s48, {120*1024}")
            seq.append(('pf', npf[0])); npf[0] += 1
        return C
    for s in range(D):
        for c in issue(s): k(c)
    issue_epi()
    if kind == 'f2':
        for i in range(4): k(f"v_mov_b32 v{204+i}, -1")
        k(f"s_add_u32 s45, s44, {OP}")
        for q in range(2):
            k(f"buffer_store_dwordx4 {vr(204)}, v1, s[4:7], s45 offen offset:{1024*q} sc1"); seq.append(('po', q))
        k(f"""
        s_lshl_b32 s45, s16, 7
        s_add_u32 s45, s45, {KMAX}
        s_cmp_lg_u32 s17, 0
        s_cselect_b32 s45, 0x7ff00000, s45
        v_and_b32 v2, 0x70, v1
        buffer_store_dwordx4 {vr(204)}, v2, s[4:7], s45 offen sc1
        """); seq.append(('po', 2))
    if f1:
        k.srd(12, 20, KMAX)
        k(f"s_lshr_b32 s48, s2, 3\ns_lshl_b32 s48, s48, 12\ns_add_u32 s48, s48, s36\ns_add_u32 s48, s48, {WX}")
    k.stamp(1)
    prev = []
    for s in range(nst + 1):
        Rd, C = [], []
        if s < nst:
            wait_for(last[s])
            k("s_barrier")
            Rd = reads(s)
            C = issue(s + D) if s + D < nst else (prefetch(-(-17//D)) if f1 and PF else [])
        else:
            k.stamp(4)
        M = mfmas(s-1) if s else []
        per = -(-len(Rd)//len(M)) if M else len(Rd)
        nrd, done = 0, -1
        for i in range(max(len(M), len(C), 1)):
            if i < len(M):
                if M[i][0] > done:
                    done = M[i][0]
                    k(f"s_waitcnt lgkmcnt({min(15, nrd + sum(1 for r in prev if r[0] > done))})")
                k(M[i][1])
            for r in Rd[nrd:nrd+per]: k(r[1])
            nrd = min(len(Rd), nrd + per)
            if i < len(C): k(C[i])
        assert nrd == len(Rd)
        prev = Rd
        if s == SI: init_acc()
        if s == 0: k.stamp(2)
        if s == nst//2: k.stamp(3)
    T = RB
    if kind == 'q':
        k(f"v_mul_f32 v12, {hex(f2u(QSCALE))}, v11\ns_add_u32 s45, s44, {QP}\ns_and_b32 s52, s3, 1\ns_lshl_b32 s52, s52, 12\nv_add_u32 v14, s52, v1\ns_nop 13")
        nq = 1 if kv == 'k' else 4
        L = k.lab("x")
        k(f"s_cmp_lt_u32 s3, 2\ns_cbranch_scc1 {L}")
        for q in range(nq): k(f"ds_write_b128 v14, {vr(32+4*q)} offset:{3*SLOT+1024*q}")
        k(f"{L}:")
        for i in range(16): k(f"v_mul_f32 v{16+i}, v{16+i}, v12")
    elif f1:
        k(f"""
        v_mov_b32 v13, v12
        v_mul_f32 v14, {hex(f2u(C1))}, v11
        v_mul_f32 v2, v11, v11
        v_mul_f32 v8, {hex(f2u(0.044715))}, v14
        v_mov_b32 v15, v14
        v_mul_f32 v8, v8, v2
        s_mul_i32 s49, s16, 86
        s_lshl_b32 s51, s17, 1
        s_add_u32 s49, s49, s51
        v_mov_b32 v9, v8
        s_lshl_b32 s49, s49, 10
        s_add_u32 s49, s49, {HP}
        s_add_u32 s50, s49, 2048
        s_add_u32 s51, s49, 4096
        s_cmp_eq_u32 s17, 42
        s_cselect_b32 s50, 0x7ff00000, s50
        s_cselect_b32 s51, 0x7ff00000, s51
        s_nop 7
        """)
        for g in range(6):
            P = [(16+8*g+2*p, T+16*(g & 1)+2*p) for p in range(4)]
            for a, t in P: k(f"v_pk_mul_f32 {vr(t,2)}, {vr(a,2)}, {vr(a,2)}")
            for a, t in P: k(f"v_pk_fma_f32 {vr(t,2)}, {vr(t,2)}, v[8:9], v[14:15]")
            for a, t in P: k(f"v_pk_mul_f32 {vr(t,2)}, {vr(a,2)}, {vr(t,2)}")
            for a, t in P: k(f"v_exp_f32 v{t}, v{t}\nv_exp_f32 v{t+1}, v{t+1}")
            for a, t in P: k(f"v_pk_fma_f32 {vr(t,2)}, {vr(t,2)}, v[12:13], v[12:13]")
            for a, t in P: k(f"v_rcp_f32 v{t}, v{t}\nv_rcp_f32 v{t+1}, v{t+1}")
            for a, t in P: k(f"v_pk_mul_f32 {vr(t,2)}, {vr(a,2)}, {vr(t,2)}")
            o = T + 32 + 4*g
            for p, (a, t) in enumerate(P): k(f"v_cvt_pk_bf16_f32 v{o+p}, v{t}, v{t+1}")
            k(f"buffer_store_dwordx4 {vr(o)}, v1, s[4:7], s{49+g//2} offen offset:{1024*(g&1)}")
        k("s_waitcnt vmcnt(6)")
        k.stamp(6)
        return
    else:
        k(f"s_add_u32 s45, s44, {X1P if kind == 'wo' else X0P}")
        if final:
            k(f"""
            v_lshlrev_b32 v6, 10, v5
            v_lshl_add_u32 v6, v4, 4, v6            ; o*1024 + hf*16
            s_lshl_b32 s48, s16, 15
            s_lshl_b32 s47, s17, 6
            s_add_u32 s48, s48, s47
            """)
        if True:
            k(f"""
            v_lshlrev_b32 v7, 4, v5
            v_lshl_add_u32 v7, v4, 2, v7        ; o*16 + hf*4
            s_lshl_b32 s46, s16, 12
            s_bfe_u32 s47, s17, 0x20001
            s_lshl_b32 s47, s47, 10
            s_add_u32 s46, s46, s47
            s_lshr_b32 s47, s17, 3
            s_lshl_b32 s47, s47, 9
            s_add_u32 s46, s46, s47
            s_and_b32 s47, s17, 1
            s_lshl_b32 s47, s47, 3
            s_add_u32 s46, s46, s47
            s_add_u32 s46, s46, {STB if kind == 'wo' else STA}
            """)
        k("s_nop 12")
        for i in range(16): k(f"v_add_f32 v{16+i}, v{16+i}, v{E+16+i}")
    for p in range(8):
        k(f"v_cvt_pk_bf16_f32 v{T+p}, v{16+2*p}, v{17+2*p}")
    k(f"buffer_store_dwordx4 {vr(T)}, v1, s[4:7], s45 offen")
    k(f"buffer_store_dwordx4 {vr(T+4)}, v1, s[4:7], s45 offen offset:1024")
    if final:
        for p in range(8): k(f"v_mov_b32 v{T+8+p}, v{T+p}")
        k(f"""
        v_permlane32_swap_b32 v{T+8}, v{T+10}
        v_permlane32_swap_b32 v{T+9}, v{T+11}
        s_nop 0
        v_permlane32_swap_b32 v{T+12}, v{T+14}
        v_permlane32_swap_b32 v{T+13}, v{T+15}
        s_nop 1
        buffer_store_dwordx4 {vr(T+8)}, v6, s[12:15], s48 offen
        buffer_store_dwordx4 {vr(T+12)}, v6, s[12:15], s48 offen offset:32
        """)
    if kind != 'q':
        emit_stats_out(k, 16, 12, 13, 7, 46)
    k.stamp(6)
    if kv:
        k(f"s_waitcnt lgkmcnt(0)\ns_barrier\ns_cmp_ge_u32 s3, 2\ns_cbranch_scc1 {k.name}_end")
        for q in range(nq): k(f"ds_read_b128 {vr(16+4*q)}, v14 offset:{3*SLOT+1024*q}")
        k("s_waitcnt lgkmcnt(0)")
        for i in range(4*nq): k(f"v_add_f32 v{32+i}, v{32+i}, v{16+i}")
    if kv == 'k':
        for i in range(4): k(f"v_mul_f32 v{32+i}, v{32+i}, v11")
        k(f"""
        v_cvt_pk_bf16_f32 v{T+8}, v32, v33
        v_cvt_pk_bf16_f32 v{T+9}, v34, v35
        v_mul_f32 v12, v32, v32
        v_fma_f32 v12, v33, v33, v12
        v_fma_f32 v12, v34, v34, v12
        v_fma_f32 v12, v35, v35, v12
        v_lshlrev_b32 v6, 4, v5
        s_lshl_b32 s45, s16, 10
        s_and_b32 s46, s38, 1
        s_lshl_b32 s46, s46, 9
        s_add_u32 s45, s45, s46
        s_lshr_b32 s46, s38, 1
        s_lshl_b32 s46, s46, 3
        s_add_u32 s45, s45, s46
        s_add_u32 s45, s45, {KP}
        buffer_store_dwordx2 {vr(T+8,2)}, v6, s[4:7], s45 offen
        """)
        dpp_max(k, 12, 30, 31)
        k(f"""
        v_mov_b32 v13, s30
        v_mov_b32 v6, 0
        s_lshl_b32 s45, s16, 4
        s_lshl_b32 s46, s38, 2
        s_add_u32 s45, s45, s46
        s_add_u32 s45, s45, {KMAX}
        buffer_store_dword v13, v6, s[4:7], s45 offen
        """)
    if kv == 'v':
        for i in range(16): k(f"v_mul_f32 v{32+i}, v{32+i}, v{48+i}")
        for p in range(8): k(f"v_cvt_pk_bf16_f32 v{T+8+p}, v{32+2*p}, v{33+2*p}")
        k(f"""
        s_lshl_b32 s46, s38, 2
        s_sub_u32 s46, s46, 16
        v_and_b32 v6, 3, v5
        v_add_u32 v6, s46, v6
        v_bfe_u32 v7, v5, 2, 1
        v_lshl_add_u32 v6, v7, 4, v6
        v_and_b32 v7, 27, v6
        v_cmp_eq_u32 vcc, 16, v7
        v_mov_b32 v8, 0x3f803f80
        v_lshlrev_b32 v6, 4, v6
        v_lshl_add_u32 v6, v4, 9, v6
        v_cndmask_b32 v8, 0, v8, vcc
        v_cmp_gt_u32 vcc, 4, v5
        s_lshl_b32 s45, s16, 11
        s_add_u32 s45, s45, {VP}
        s_nop 0
        """)
        for p in range(8): k(f"v_cndmask_b32 v{T+8+p}, v8, v{T+8+p}, vcc")
        k(f"""
        v_cmp_gt_u32 vcc, 8, v5
        s_and_saveexec_b64 s[30:31], vcc
        buffer_store_dwordx4 {vr(T+8)}, v6, s[4:7], s45 offen
        buffer_store_dwordx4 {vr(T+12)}, v6, s[4:7], s45 offen offset:1024
        """)
```

```python
from gen_common import *
import math
QSCALE = 0.25*math.log2(math.e)
THR = 60.0

SC = os.environ.get('SC', 'sc1')
SCK = os.environ.get('SCK', 'sc1')
PE = int(os.environ.get('PE', 1))
PSW = int(os.environ.get('PSW', 55))
PF_END = int(os.environ.get('PF_END', WQ_P))
def gen_attn():
    OL = 8*3*2304
    k = K("attn_kernel", 256, 512, OL + 32768, 176)
    k.agpr = 64
    XT = int(os.environ.get("XT", 0))
    n = k.name
    Q, O, S, P, KV, M = 16, 32, 96, 128, 136, 160
    def Kb(b): return KV + 12*b
    def Vb(b, h): return KV + 12*b + 4 + 4*h
    k(f"""
    s_cmp_ge_u32 s2, 256
    s_cbranch_scc1 {n}_end
    s_load_dwordx2 s[20:21], s[0:1], {A_WS}
    v_lshrrev_b32 v2, 6, v0
    v_and_b32 v3, 63, v0
    v_readfirstlane_b32 s3, v2                  ; wave
    v_lshlrev_b32 v1, 4, v3                     ; lane*16
    v_lshlrev_b32 v2, 2, v3                     ; lane*4
    s_and_b32 s16, s2, 7
    s_lshl_b32 s16, s16, 3
    s_lshr_b32 s17, s2, 5
    s_add_u32 s16, s16, s17                     ; tb
    s_bfe_u32 s17, s2, 0x20003
    {"s_lshr_b32 s16, s2, 2" if XT else ""}
    {"s_and_b32 s17, s2, 3" if XT else ""}
    s_mov_b32 s54, s17
    s_lshl_b32 s38, s17, 2
    s_and_b32 s39, s3, 3
    s_add_u32 s38, s38, s39
    s_lshr_b32 s39, s3, 2                       ; k half
    s_lshl_b32 s52, s38, 15
    s_lshl_b32 s44, s39, 12
    s_add_u32 s52, s52, s44
    s_add_u32 s52, s52, {WO_P}
    s_lshl_b32 s53, s17, 13
    s_add_u32 s43, s52, s53
    s_and_b32 s18, s3, 1                        ; g
    s_lshr_b32 s19, s3, 1                       ; kq
    s_lshl_b32 s22, s16, 5
    s_lshl_b32 s17, s17, 3
    s_add_u32 s22, s22, s17
    s_lshl_b32 s17, s18, 2
    s_add_u32 s22, s22, s17
    s_waitcnt lgkmcnt(0)
    """)
    if PSW:
        k(f"s_setprio 1\ns_cmp_lt_u32 s3, 4\ns_cbranch_scc1 {n}_p\ns_setprio 2\n{n}_p:")
    k.srd(4, 20, WS_END)
    k.srd(8, 20, PF_END)
    k(f"s_lshr_b32 s42, s2, 3\ns_lshl_b32 s42, s42, 3\ns_add_u32 s42, s42, s3\ns_lshl_b32 s42, s42, 10\ns_add_u32 s42, s42, {W1_P}")
    KVP, QX, QL, KM = 4096, 36864, 4096, 53248
    XO, WK, ST, B, WXQ, WXK, SEL, KA, QA = 96, 112, 64, 80, 84, 88, 92, 32, 48
    OOB = "0x7ff00000"
    def wq_loads():
        for i in range(16):
            k(f"buffer_load_dwordx4 a[{4*i}:{4*i+3}], v1, s[4:7], s55 offen offset:{1024*(i&3)}" + ("\ns_add_u32 s55, s55, 4096" if i & 3 == 3 else ""))
    k(f"""
    s_add_u32 s24, s22, s19
    s_lshl_b32 s24, s24, 10
    s_add_u32 s24, s24, {QP}
    s_lshl_b32 s56, s3, 12                      ; wave*4096
    s_lshl_b32 s26, s16, 15
    s_add_u32 s26, s26, s56
    s_add_u32 s26, s26, {X0P}
    s_and_b32 s27, s3, 3
    s_lshl_b32 s27, s27, 10
    s_lshl_b32 s28, s16, 12
    s_add_u32 s28, s28, s27
    s_mov_b32 m0, s27
    s_add_u32 s28, s28, {STA}
    s_cmp_ge_u32 s3, 4
    s_cbranch_scc1 {n}_ns
    buffer_load_dwordx4 v1, s[4:7], s28 offen lds
    {n}_ns:
    """)
    for i in range(4): k(f"buffer_load_dwordx4 {vr(XO+4*i)}, v1, s[4:7], s26 offen offset:{1024*i}")
    k(f"""
    v_and_b32 v4, 31, v3
    s_lshl_b32 s27, s54, 8
    v_add_u32 v5, s27, v1
    v_mov_b32 v6, {OOB}
    v_cmp_gt_u32 vcc, 16, v4
    s_add_u32 s27, s56, {WKV_P}
    s_cmp_ge_u32 s54, 2
    s_cselect_b32 s27, {OOB}, s27
    v_cndmask_b32 v5, v6, v5, vcc
    s_cmp_lt_u32 s3, 2
    s_mov_b32 s28, {OOB}
    s_cselect_b32 s28, {WX+16*1024}, s28
    s_lshl_b32 s29, s38, 10
    s_add_u32 s29, s29, {WX}
    s_cmp_lg_u32 s39, 0
    s_cselect_b32 s29, {OOB}, s29
    s_lshl_b32 s55, s38, 15
    s_lshl_b32 s30, s39, 14
    s_add_u32 s55, s55, s30
    s_add_u32 s55, s55, {WQ_P}
    """)
    for i in range(4): k(f"buffer_load_dwordx4 {vr(WK+4*i)}, v5, s[4:7], s27 offen offset:{1024*i}")
    k(f"""
    buffer_load_dwordx4 {vr(WXK)}, v5, s[4:7], s28 offen
    buffer_load_dwordx4 {vr(WXQ)}, v1, s[4:7], s29 offen
    s_add_u32 s30, s56, {OL}
    v_add_u32 v6, s30, v1
    v_add_u32 v7, s56, v1
    s_cmp_lt_u32 s54, 2
    s_cselect_b32 s57, s54, -1
    s_cselect_b32 s58, s54, 7
    s_add_u32 s57, s57, 1
    s_barrier
    s_cmp_gt_u32 s3, s58
    s_cbranch_scc1 {n}_nw
    """)
    wq_loads()
    k(f"s_waitcnt vmcnt(16)\ns_branch {n}_nw2\n{n}_nw:\ns_waitcnt vmcnt(0)\n{n}_nw2:")
    for i in range(4): k(f"ds_write_b128 v6, {vr(XO+4*i)} offset:{1024*i}")
    k(f"s_cmp_ge_u32 s54, 2\ns_cbranch_scc1 {n}_k2\ns_cmp_eq_u32 s54, 0\ns_cbranch_scc1 {n}_k1")
    for i in range(4): k(f"{MFMA} {vr(KA,16)}, {vr(XO+4*i)}, {vr(WK+4*i)}, {vr(KA,16) if i else 0}")
    k(f"s_nop 15\ns_nop 1\nds_write_b128 v7, {vr(KA+8)} offset:{KVP+2048}\nds_write_b128 v7, {vr(KA+12)} offset:{KVP+3072}")
    k(f"s_branch {n}_k4\n{n}_k1:")
    for i in range(4): k(f"{MFMA} {vr(KA,16)}, {vr(WK+4*i)}, {vr(XO+4*i)}, {vr(KA,16) if i else 0}")
    k(f"""
    s_nop 15
    s_nop 1
    {n}_k4:
    ds_write_b128 v7, {vr(KA)} offset:{KVP}
    ds_write_b128 v7, {vr(KA+4)} offset:{KVP+1024}
    {n}_k2:
    s_lshl_b32 s30, s3, 11
    v_add_u32 v14, s30, v1
    s_xor_b32 s30, s3, 1
    s_lshl_b32 s30, s30, 12
    v_add_u32 v15, s30, v14
    s_waitcnt lgkmcnt(0)
    s_barrier
    """)
    k.stamp(0)
    for q in range(4): k(f"ds_read_b128 {vr(ST+4*q)}, v1 offset:{1024*q}")
    k(f"s_cmp_ge_u32 s3, s57\ns_cbranch_scc1 {n}_k8\ns_setprio 3")
    for w in range(1, 8):
        for q in range(2): k(f"ds_read_b128 {vr(96+8*(w-1)+4*q)}, v{15 if w == 1 else 14} offset:{KVP+(4096*w if w > 1 else 0)+1024*q}")
    k(f"""
    s_waitcnt lgkmcnt(14)
    s_branch {n}_k9
    {n}_k8:
    s_cmp_le_u32 s3, s58
    s_cbranch_scc1 {n}_kb
    """)
    wq_loads()
    k(f"""
    {n}_kb:
    s_waitcnt lgkmcnt(0)
    {n}_k9:
    v_cmp_gt_u32 vcc, 32, v3
    v_mov_b32 v{SEL}, 0
    v_mov_b32 v{SEL+1}, 0
    v_mov_b32 v{SEL+2}, 0
    v_mov_b32 v{SEL+3}, 0x3f803f80
    v_cndmask_b32 v{SEL+3}, 0, v{SEL+3}, vcc
    """)
    emit_stats(k, ST, 10, 11, 12, 13)
    k(f"""
    v_mul_f32 v12, v13, v11                     ; sqrt(var+eps)
    v_cvt_pk_bf16_f32 v8, -v10, -v10
    v_cvt_pk_bf16_f32 v9, v12, v12
    v_cvt_pk_bf16_f32 v13, v11, v11
    v_and_b32 v8, 0xffff0000, v8
    v_and_b32 v9, 0xffff0000, v9
    v_and_b32 v13, 0xffff0000, v13
    v_sub_f32_e64 v8, -v10, v8
    v_sub_f32 v9, v12, v9
    v_sub_f32 v13, v11, v13
    v_cvt_pk_bf16_f32 v{B}, -v10, v8
    v_cvt_pk_bf16_f32 v{B+1}, -v10, v8
    v_cvt_pk_bf16_f32 v{B+2}, v12, v9
    v_cvt_pk_bf16_f32 v{B+3}, v11, v13
    s_cmp_ge_u32 s3, s57
    s_cbranch_scc1 {n}_q
    s_lshl_b32 s30, s16, 7
    s_add_u32 s30, s30, {KMAX}
    s_cmp_eq_u32 s54, 0
    s_cbranch_scc1 {n}_k3
    {MFMA} {vr(KA,16)}, {vr(B)}, {vr(WXK)}, {vr(KA,16)}
    {MFMA} {vr(QA,16)}, {vr(B)}, {vr(SEL)}, 0
    s_branch {n}_k7
    {n}_k3:
    {MFMA} {vr(KA,16)}, {vr(WXK)}, {vr(B)}, {vr(KA,16)}
    {n}_k7:
    v_and_b32 v9, 27, v4
    v_cmp_eq_u32 vcc, 16, v9
    v_mov_b32 v9, 0x3f803f80
    s_nop 1
    v_cndmask_b32 v9, 0, v9, vcc
    """)
    for w in range(1, 7):
        k(f"s_waitcnt lgkmcnt({12-2*w})")
        for i in range(8): k(f"v_add_f32 v{96+i}, v{96+i}, v{96+8*w+i}")
    k(f"s_cmp_eq_u32 s54, 0\ns_cbranch_scc1 {n}_k5\ns_cmp_eq_u32 s3, 0\ns_cbranch_scc1 {n}_ka")
    for i in range(8): k(f"v_mov_b32 v{KA+i}, v{KA+8+i}\nv_mov_b32 v{QA+i}, v{QA+8+i}")
    k(f"{n}_ka:")
    for i in range(8): k(f"v_add_f32 v{96+i}, v{96+i}, v{KA+i}")
    for i in range(8): k(f"v_mul_f32 v{96+i}, v{96+i}, v{QA+i}")
    for p in range(4): k(f"v_cvt_pk_bf16_f32 v{104+p}, v{96+2*p}, v{97+2*p}")
    for p in range(4): k(f"v_or_b32 v{104+p}, v{104+p}, v9")
    k(f"""
    s_lshl_b32 s31, s16, 1
    s_add_u32 s31, s31, s3
    s_lshl_b32 s31, s31, 10
    s_add_u32 s31, s31, {VP}
    buffer_store_dwordx4 {vr(104)}, v1, s[4:7], s31 offen {SC}
    s_lshl_b32 s31, s3, 2
    s_add_u32 s30, s30, s31
    s_add_u32 s30, s30, 4
    s_mov_b32 s32, 0
    s_branch {n}_k6
    {n}_k5:
    """)
    for i in range(8): k(f"v_add_f32 v{96+i}, v{96+i}, v{KA+i}")
    for i in range(8): k(f"v_mul_f32 v{96+i}, v{96+i}, v11")
    for p in range(4): k(f"v_cvt_pk_bf16_f32 v{104+p}, v{96+2*p}, v{97+2*p}")
    k(f"""
    s_lshl_b32 s31, s16, 10
    s_add_u32 s31, s31, {KP}
    buffer_store_dwordx4 {vr(104)}, v1, s[4:7], s31 offen {SC}
    v_mul_f32 v12, v96, v96
    """)
    for i in range(1, 8): k(f"v_fma_f32 v12, v{96+i}, v{96+i}, v12")
    k("v_mov_b32 v13, v12\ns_nop 1\nv_permlane32_swap_b32 v12, v13\ns_nop 1\nv_add_f32 v12, v12, v13")
    dpp_max(k, 12, 32, 33)
    k(f"""
    s_min_u32 s32, s32, -2
    {n}_k6:
    v_mov_b32 v13, s32
    v_mov_b32 v9, 0
    s_mov_b64 exec, 1
    s_waitcnt vmcnt(0)
    buffer_store_dword v13, v9, s[4:7], s30 offen {SC}
    s_mov_b64 exec, -1
    s_setprio 1
    """)
    k.stamp(6)
    k(f"""
    {n}_q:
    s_lshl_b32 s30, s39, 14
    s_add_u32 s30, s30, {OL}
    v_add_u32 v6, s30, v1
    v_lshlrev_b32 v5, 7, v3
    s_mov_b32 s28, {KMAX}
    s_mov_b32 s34, 0x1000
    """)
    for i in range(16): k(f"ds_read_b128 {vr(96+4*i)}, v6 offset:{1024*i}")
    k(f"{MFMA} {vr(QA,16)}, {vr(WXQ)}, {vr(B)}, 0")
    for i in range(16):
        if i == 15: k(f"s_cmp_lt_u32 s3, s57\ns_cbranch_scc1 {n}_kc\ns_waitcnt vmcnt(0)\n{n}_kc:")
        k(f"s_waitcnt vmcnt({max(15-i, 1)}) lgkmcnt({15-i})\n{MFMA} {vr(QA,16)}, a[{4*i}:{4*i+3}], {vr(96+4*i)}, {vr(QA,16)}")
    k.stamp(7)
    k(f"""
    s_xor_b32 s30, s3, 4
    s_lshl_b32 s30, s30, 11
    v_add_u32 v6, s30, v1
    s_lshl_b32 s30, s3, 11
    v_add_u32 v7, s30, v1
    v_mul_f32 v12, {hex(f2u(QSCALE))}, v11
    s_lshl_b32 s40, s19, 14
    s_add_u32 s40, s40, {KP}
    s_lshl_b32 s41, s19, 15
    s_add_u32 s41, s41, {VP}
    s_nop 7
    s_cmp_eq_u32 s39, 0
    s_cbranch_scc1 {n}_sw
    """)
    for i in range(8): k(f"v_swap_b32 v{QA+i}, v{QA+8+i}")
    k(f"""
    {n}_sw:
    ds_write_b128 v6, {vr(QA+8)} offset:{QX}
    ds_write_b128 v6, {vr(QA+12)} offset:{QX+1024}
    s_and_b32 s30, s3, 3
    s_lshl_b32 s30, s30, 1
    s_add_u32 s30, s30, s39
    s_lshl_b32 s30, s30, 10
    v_add_u32 v8, s30, v1
    s_waitcnt lgkmcnt(0)
    s_barrier
    ds_read_b128 {vr(QA+8)}, v7 offset:{QX}
    ds_read_b128 {vr(QA+12)}, v7 offset:{QX+1024}
    s_waitcnt lgkmcnt(0)
    """)
    for i in range(8): k(f"v_add_f32 v{QA+i}, v{QA+i}, v{QA+8+i}")
    for i in range(8): k(f"v_mul_f32 v{QA+i}, v{QA+i}, v12")
    for p in range(4): k(f"v_cvt_pk_bf16_f32 v{P+p}, v{QA+2*p}, v{QA+2*p+1}")
    k(f"ds_write_b128 v8, {vr(P)} offset:{QL}\ns_lshl_b32 s31, s18, 2")
    for b in range(4):
        k(f"s_xor_b32 s30, s19, {b}\ns_add_u32 s30, s30, s31\ns_lshl_b32 s30, s30, 10\nv_add_u32 v{12+b}, s30, v1")
    POLL = f"buffer_load_dwordx3 v[100:102], v5, s[4:7], s28 offen {SC}"
    if PE: k(f"s_cmp_lg_u32 s3, 7\ns_cbranch_scc1 {n}_pe\n{POLL}\n{n}_pe:")
    k("s_waitcnt lgkmcnt(0)\ns_barrier")
    for b in range(4): k(f"ds_read_b128 {vr(Q+4*b)}, v{12+b} offset:{QL}")
    if not PE: k(f"s_cmp_lg_u32 s3, 7\ns_cbranch_scc1 {n}_pe\n{POLL}\n{n}_pe:")
    for i in range(64):
        k(f"v_mov_b32 v{O+i}, 0")
    for i in range(4):
        k(f"v_mov_b32 v{P+4+i}, 0\nv_mov_b32 v{Vb(1,1)+i}, 0\nv_mov_b32 v{8+i}, 0")
    k("s_waitcnt lgkmcnt(0)")
    for b in range(4):
        for r in range(4):
            k(f"v_dot2c_f32_bf16 v{8+b}, v{Q+4*b+r}, v{Q+4*b+r}")
    k(f"""
    s_cmp_lg_u32 s3, 7
    s_cbranch_scc1 {n}_np
    s_branch {n}_pc
    {n}_pl:
    {POLL}
    {n}_pc:
    s_sub_u32 s34, s34, 1
    s_waitcnt vmcnt(0)
    s_cbranch_scc1 {n}_pg
    v_max3_u32 v103, v100, v101, v102
    v_cmp_eq_u32 vcc, -1, v103
    s_nop 4
    s_cbranch_vccnz {n}_pl
    {n}_pg:
    """)
    k.stamp(6)
    k(f"""
    ds_write_b32 v2, v100 offset:{KM}
    s_waitcnt lgkmcnt(0)
    {n}_np:
    s_barrier
    ds_read_b32 v6, v2 offset:{KM}
    buffer_load_dwordx4 {vr(Kb(0))}, v1, s[4:7], s40 offen {SCK}
    buffer_load_dwordx4 {vr(Vb(0,0))}, v1, s[4:7], s41 offen {SCK}
    buffer_load_dwordx4 {vr(Vb(0,1))}, v1, s[4:7], s41 offen offset:1024 {SCK}
    s_add_u32 s40, s40, 1024
    s_add_u32 s41, s41, 2048
    s_waitcnt lgkmcnt(0)
    v_max_f32_dpp v6, v6, v6 quad_perm:[1,0,3,2] row_mask:0xf bank_mask:0xf
    s_nop 2
    v_max_f32_dpp v6, v6, v6 quad_perm:[2,3,0,1] row_mask:0xf bank_mask:0xf
    v_permlane32_swap_b32 v8, v9
    v_permlane32_swap_b32 v10, v11
    v_max_f32_dpp v6, v6, v6 row_half_mirror row_mask:0xf bank_mask:0xf
    v_add_f32 v8, v8, v9
    v_add_f32 v10, v10, v11
    v_max_f32_dpp v6, v6, v6 row_mirror row_mask:0xf bank_mask:0xf
    v_max_f32 v8, v8, v10
    s_nop 0
    v_readlane_b32 s30, v6, 0
    v_readlane_b32 s31, v6, 16
    v_readlane_b32 s32, v6, 32
    v_readlane_b32 s33, v6, 48
    s_max_u32 s30, s30, s31
    s_max_u32 s32, s32, s33
    s_max_u32 s30, s30, s32
    v_mul_f32 v8, s30, v8
    s_mov_b32 s31, {hex(f2u(THR*THR))}
    v_cmp_nge_f32 vcc, s31, v8
    s_mov_b32 s34, 8
    s_nop 3
    s_cbranch_vccnz {n}_slow
    """)
    def wload(n):
        return f"buffer_load_dwordx4 a[{4*n}:{4*n+3}], v1, s[4:7], s43 offen offset:{1024*(n&3)}" + ("\ns_add_u32 s53, s53, 8192\ns_and_b32 s53, s53, 0x7fff\ns_add_u32 s43, s52, s53" if n & 3 == 3 else "")
    def main_loop(slow):
        L = k.lab("loop")
        for i in range(4): k(f"v_mov_b32 v{S+28+i}, 0")
        if slow:
            for i in range(16): k(wload(i))
        k(f"s_waitcnt vmcnt(0)\n{MFMA} {vr(S,16)}, {vr(Kb(0))}, {vr(Q)}, 0\ns_nop 15\n.p2align 6\n{L}:")
        for BB in range(2 if slow else 16):
            B = BB & 1
            for t in range(4):
                Sc, Sn = S + 16*(t & 1), S + 16*((t+1) & 1)
                tn, Bn = (t+1) & 3, (B ^ 1 if t == 3 else B)
                tp, Bp = (t-1) & 3, (B ^ 1 if t == 0 else B)
                def e(i):
                    if slow:
                        k(f"v_sub_f32 v{Sc+i}, v{Sc+i}, v{M+t}")
                    k(f"v_exp_f32 v{Sc+i}, v{Sc+i}")
                def c(p): k(f"v_cvt_pk_bf16_f32 v{P+p}, v{Sc+2*p}, v{Sc+2*p+1}")
                def cp(p): k(f"v_cvt_pk_bf16_f32 v{P+p}, v{Sn+2*p}, v{Sn+2*p+1}")
                if not slow and 4*BB + t == PSW:
                    k(f"s_cmp_lt_u32 s3, 4\ns_cbranch_scc1 {L}x\ns_setprio 0\n{L}x:")
                pf = not slow and 4 <= BB < 10
                e(0); e(1); cp(6); e(2); cp(7)
                if not (BB == 15 and t == 3):
                    if t == 3:
                        k(f"s_waitcnt vmcnt({0 if slow else 1 + pf})")
                    k(f"{MFMA} {vr(Sn,16)}, {vr(Kb(Bn))}, {vr(Q+4*tn)}, 0")
                e(3); e(4); c(0)
                k(f"{MFMA} {vr(O+16*tp,16)}, {vr(Vb(Bp,1))}, {vr(P+4)}, {vr(O+16*tp,16)}")
                if t == 0:
                    if BB < 15:
                        k(f"""
                        buffer_load_dwordx4 {vr(Kb(B^1))}, v1, s[4:7], s40 offen offset:{1024*B} {SCK}
                        buffer_load_dwordx4 {vr(Vb(B^1,0))}, v1, s[4:7], s41 offen offset:{2048*B} {SCK}
                        buffer_load_dwordx4 {vr(Vb(B^1,1))}, v1, s[4:7], s41 offen offset:{2048*B+1024} {SCK}
                        """)
                    if not slow: k(wload(BB))
                    if pf: k(f"buffer_load_dwordx4 {vr(164)}, v1, s[8:11], s42 offen\ns_add_u32 s42, s42, 0x40000")
                e(5); e(6); c(1); e(7); e(8); c(2); e(9); e(10); c(3); e(11); e(12)
                k(f"{MFMA} {vr(O+16*t,16)}, {vr(Vb(B,0))}, {vr(P)}, {vr(O+16*t,16)}")
                c(4); e(13); e(14); c(5); e(15)
            if B: k("s_add_u32 s40, s40, 2048\ns_add_u32 s41, s41, 4096")
        if slow:
            k(f"s_sub_u32 s34, s34, 1\ns_cmp_lg_u32 s34, 0\ns_cbranch_scc1 {L}")
        k(f"""
        s_nop 0
        v_cvt_pk_bf16_f32 v{P+6}, v{S+28}, v{S+29}
        v_cvt_pk_bf16_f32 v{P+7}, v{S+30}, v{S+31}
        s_nop 1
        {MFMA} {vr(O+48,16)}, {vr(Vb(1,1))}, {vr(P+4)}, {vr(O+48,16)}
        """)
    k.stamp(1)
    main_loop(False)
    k.stamp(2)
    k(f"""
    {n}_fin:
    s_cmp_lt_u32 s3, 4
    s_cbranch_scc1 {n}_fp
    s_setprio 2
    {n}_fp:
    s_lshl_b32 s18, s18, 2
    s_lshl_b32 s44, s16, 15
    s_lshl_b32 s45, s38, 11
    s_add_u32 s45, s45, s44
    s_add_u32 s46, s45, {X0P}
    s_cmp_lg_u32 s39, 0
    s_cselect_b32 s46, 0x7ff00000, s46
    buffer_load_dwordx4 {vr(168)}, v1, s[4:7], s46 offen
    buffer_load_dwordx4 {vr(172)}, v1, s[4:7], s46 offen offset:1024
    s_add_u32 s44, s44, {OP}
    s_add_u32 s47, s22, s19
    s_lshl_b32 s47, s47, 10
    s_and_b32 s47, s47, 0x7fff
    s_nop 4
    """)
    for b in (1, 2, 3):
        k(f"""
        s_xor_b32 s30, s19, {b}
        s_add_u32 s30, s30, s18
        s_mul_i32 s30, s30, 6912
        v_add_u32 v6, s30, v1
        v_add_u32 v7, s30, v2
        ds_write_b128 v6, {vr(O+16*b)} offset:{(b-1)*2304}
        ds_write_b128 v6, {vr(O+16*b+4)} offset:{(b-1)*2304+1024}
        ds_write_b32 v7, v{O+16*b+8} offset:{(b-1)*2304+2048}
        """)
    k(f"""
    s_add_u32 s30, s19, s18
    s_mul_i32 s30, s30, 6912
    v_add_u32 v6, s30, v1
    v_add_u32 v7, s30, v2
    s_waitcnt lgkmcnt(0)
    s_barrier
    """)
    k.stamp(3)
    for s in range(3):
        k(f"""
        ds_read_b128 {vr(O+16+16*s)}, v6 offset:{s*2304}
        ds_read_b128 {vr(O+20+16*s)}, v6 offset:{s*2304+1024}
        ds_read_b32 v{O+24+16*s}, v7 offset:{s*2304+2048}
        """)
    for s in range(3):
        k(f"s_waitcnt lgkmcnt({6-3*s})")
        for i in (8, 0, 1, 2, 3, 4, 5, 6, 7):
            k(f"v_add_f32 v{O+i}, v{O+i}, v{O+16+16*s+i}")
    k(f"v_rcp_f32 v{O+8}, v{O+8}\ns_add_u32 s24, s24, {OP-QP}\ns_nop 0")
    for i in range(8):
        k(f"v_mul_f32 v{O+i}, v{O+i}, v{O+8}")
    for p in range(4):
        k(f"v_cvt_pk_bf16_f32 v{P+p}, v{O+2*p}, v{O+2*p+1}")
    k(f"""
    s_and_b32 s30, s47, 0x1fff
    s_add_u32 s30, s30, {OL}
    v_add_u32 v8, s30, v1
    s_lshl_b32 s30, s39, 12
    s_add_u32 s30, s30, {OL}
    v_add_u32 v10, s30, v1
    s_mov_b32 s34, 0x1000
    """)
    for p in range(4):
        k(f"v_min_u32 v{P+p}, -2, v{P+p}")
    k(f"""
    buffer_store_dwordx4 {vr(P)}, v1, s[4:7], s24 offen {SC}
    ds_write_b128 v8, {vr(P)}
    s_waitcnt vmcnt(1)
    """)
    k.stamp(4)
    for i in range(16):
        k(f"v_lshlrev_b32 v{O+i}, 16, v{168+i//2}" if i % 2 == 0 else f"v_and_b32 v{O+i}, 0xffff0000, v{168+i//2}")
    k("s_waitcnt lgkmcnt(0)\ns_barrier")
    for i in range(4):
        k(f"ds_read_b128 {vr(S+4*i)}, v10 offset:{1024*i}")
    for r in range(3):
        k(f"s_add_u32 s47, s47, 8192\ns_and_b32 s47, s47, 0x7fff\ns_add_u32 s{48+r}, s47, s44")
    k(f"""
    v_and_b32 v11, 31, v3
    v_lshrrev_b32 v9, 5, v3
    v_lshlrev_b32 v11, 4, v11
    v_lshl_add_u32 v11, v9, 2, v11              ; o*16 + hf*4
    s_and_b32 s30, s3, 3
    s_lshl_b32 s30, s30, 12
    v_add_u32 v9, s30, v1
    s_lshl_b32 s46, s16, 12
    s_bfe_u32 s47, s38, 0x20001
    s_lshl_b32 s47, s47, 10
    s_add_u32 s46, s46, s47
    s_lshr_b32 s47, s38, 3
    s_lshl_b32 s47, s47, 9
    s_add_u32 s46, s46, s47
    s_and_b32 s47, s38, 1
    s_lshl_b32 s47, s47, 3
    s_add_u32 s46, s46, s47
    s_add_u32 s46, s46, {STB}
    s_add_u32 s45, s45, {X1P}
    """)
    for i in range(4):
        k(f"s_waitcnt lgkmcnt({3-i})\n{MFMA} {vr(O,16)}, a[{4*i}:{4*i+3}], {vr(S+4*i)}, {vr(O,16)}")
    k("s_waitcnt vmcnt(0)")
    k(f"{n}_poll:")
    for r in range(3):
        k(f"buffer_load_dwordx4 {vr(Q+4*r)}, v1, s[4:7], s{48+r} offen {SC}")
    k(f"""
    s_sub_u32 s34, s34, 1
    s_cbranch_scc1 {n}_got
    s_waitcnt vmcnt(0)
    v_max3_u32 v6, v{Q}, v{Q+1}, v{Q+2}
    v_max3_u32 v7, v{Q+3}, v{Q+4}, v{Q+5}
    v_max3_u32 v6, v6, v{Q+6}, v{Q+7}
    v_max3_u32 v7, v7, v{Q+8}, v{Q+9}
    v_max3_u32 v6, v6, v{Q+10}, v{Q+11}
    v_max_u32 v6, v6, v7
    v_cmp_eq_u32 vcc, -1, v6
    s_nop 4
    s_cbranch_vccnz {n}_poll
    {n}_got:
    s_waitcnt vmcnt(0)
    """)

    for r in range(3):
        k(f"ds_write_b128 v8, {vr(Q+4*r)} offset:{8192*(r+1)}")
    k("s_waitcnt lgkmcnt(0)\ns_barrier")
    k.stamp(5)
    for i in range(4, 16):
        k(f"ds_read_b128 {vr(S+4*i)}, v10 offset:{8192*(i//4) + 1024*(i&3)}")
    for i in range(4, 16):
        k(f"s_waitcnt lgkmcnt({15-i})\n{MFMA} {vr(O,16)}, a[{4*i}:{4*i+3}], {vr(S+4*i)}, {vr(O,16)}")
    k(f"s_cmp_eq_u32 s39, 0\ns_cbranch_scc1 {n}_red\ns_nop 15")
    for q in range(4):
        k(f"ds_write_b128 v9, {vr(O+4*q)} offset:{1024*q}")
    k(f"""
    s_lshl_b32 s30, s16, 11
    s_lshl_b32 s31, s38, 7
    s_add_u32 s30, s30, s31
    s_add_u32 s30, s30, {QP}
    v_mov_b32 v12, -1
    v_mov_b32 v13, 0
    s_waitcnt lgkmcnt(0)
    s_barrier
    s_mov_b64 exec, 1
    buffer_store_dword v12, v13, s[4:7], s30 offen sc1
    s_endpgm
    {n}_red:
    """)
    k("s_barrier")
    for q in range(4):
        k(f"ds_read_b128 {vr(O+16+4*q)}, v9 offset:{1024*q}")
    for q in range(4):
        k(f"s_waitcnt lgkmcnt({3-q})")
        for i in range(4*q, 4*q+4):
            k(f"v_add_f32 v{O+i}, v{O+i}, v{O+16+i}")
    for p in range(8):
        k(f"v_cvt_pk_bf16_f32 v{P+p}, v{O+2*p}, v{O+2*p+1}")
    k(f"buffer_store_dwordx4 {vr(P)}, v1, s[4:7], s45 offen")
    k(f"buffer_store_dwordx4 {vr(P+4)}, v1, s[4:7], s45 offen offset:1024")
    emit_stats_out(k, O, 12, 13, 11, 46)
    k(f"""
    {n}_end:
    s_endpgm
    {n}_slow:
    s_mov_b32 s35, {KP}
    s_mov_b32 s36, 64
    """)
    for t in range(4):
        k(f"v_mov_b32 v{M+t}, 0xff800000")
    L = k.lab("mx")
    k(f"{L}:\nbuffer_load_dwordx4 {vr(Kb(1))}, v1, s[4:7], s35 offen {SC}\ns_waitcnt vmcnt(0)")
    for h in range(2):
        for t in range(2):
            k(f"{MFMA} {vr(S+16*t,16)}, {vr(Kb(1))}, {vr(Q+8*h+4*t)}, 0")
        k("s_nop 15\ns_nop 3")
        for t in range(2):
            for i in range(8):
                k(f"v_max3_f32 v{M+2*h+t}, v{M+2*h+t}, v{S+16*t+2*i}, v{S+16*t+2*i+1}")
    k(f"""
    s_add_u32 s35, s35, 1024
    s_sub_u32 s36, s36, 1
    s_cmp_lg_u32 s36, 0
    s_cbranch_scc1 {L}
    """)
    for t in range(4):
        k(f"v_mov_b32 v{8+t}, v{M+t}")
    k("s_nop 1")
    for t in range(4):
        k(f"v_permlane32_swap_b32 v{8+t}, v{M+t}")
    k("s_nop 1")
    for t in range(4):
        k(f"v_max_f32 v{M+t}, v{M+t}, v{8+t}")
    main_loop(True)
    k(f"s_branch {n}_fin")
    return k
```

```python
from gen_common import *

def gen_prep():
    k = K("prep_kernel", 0, 512, 4096, 64)
    k(f"""
    s_load_dwordx2 s[20:21], s[0:1], {A_WS}
    s_load_dwordx4 s[24:27], s[0:1], {A_X}      ; x, wq
    s_load_dwordx4 s[28:31], s[0:1], {A_WK}
    s_load_dwordx2 s[32:33], s[0:1], {A_WO}
    s_load_dwordx4 s[36:39], s[0:1], {A_W1}     ; w1, b1
    s_load_dwordx2 s[34:35], s[0:1], {A_W2}
    v_lshrrev_b32 v1, 6, v0
    v_and_b32 v2, 15, v0
    v_readfirstlane_b32 s3, v1
    v_bfe_u32 v3, v0, 4, 1                      ; hf
    v_bfe_u32 v4, v0, 5, 1
    v_lshlrev_b32 v5, 4, v4
    v_lshl_add_u32 v5, v3, 2, v5
    v_lshlrev_b32 v7, 10, v4
    v_lshl_add_u32 v7, v3, 9, v7
    v_lshl_add_u32 v7, v2, 5, v7
    s_mov_b32 s18, 0x05040100
    s_mov_b32 s19, 0x07060302
    s_mov_b32 s23, 0x3f803f80
    s_mov_b32 s22, 0
    s_waitcnt lgkmcnt(0)
    """)
    k.srd(4, 20, WS_END)
    base = 0
    LP, LX, LE, LKV, LT = k.lab("pack"), k.lab("xp"), k.lab("end"), k.lab("kv"), k.lab("tr")
    def wjob(cnt, ptr, Krows, N, dst, wx=None, nbias=0, tgt=None):
        nonlocal base
        nx = k.lab("n")
        st = 2*N
        A, B, C, E, ds, dd = (64, 64*st, 32768, 4096, 32*st, 2048) if Krows == 512 else (32*st, 128, 2048, 2*86*1024, 64, 86*1024)
        k(f"s_cmp_ge_u32 s2, {base+cnt}\ns_cbranch_scc1 {nx}")
        k.srd(8, ptr, Krows*st)
        k.srd(60, 38, nbias)
        k(f"""
        s_sub_u32 s12, s2, {base}
        s_mov_b32 s13, {st}
        s_mul_i32 s14, s12, {A}
        s_mul_i32 s15, s3, {B}
        s_add_u32 s14, s14, s15
        s_mul_i32 s16, s12, {C}
        s_mul_i32 s15, s3, {E}
        s_add_u32 s16, s16, s15
        s_add_u32 s16, s16, {dst}
        s_add_u32 s17, s16, {dd}
        s_mov_b32 s15, {ds}
        """)
        if wx is not None:
            k(f"s_lshl_b32 s22, s12, 10\ns_add_u32 s22, s22, {WX + wx*1024}")
        k(f"s_branch {tgt or LP}\n{nx}:")
        base += cnt
    wjob(43, 36, 512, 1376, W1_P, 17, 2752)
    wjob(16, 26, 512, 512, WQ_P, 0)
    wjob(1, 28, 512, 16, WKV_P, 16, tgt=LKV)
    xbase = base
    k(f"s_cmp_lt_u32 s2, {base+64}\ns_cbranch_scc1 {LX}")
    base += 64
    wjob(16, 32, 512, 512, WO_P)
    wjob(43, 34, 1376, 512, W2_P)
    k.grid = base
    k(f"{LE}:\ns_endpgm")
    def offs():
        for j in range(8):
            k(f"s_mul_i32 s{40+j}, s13, {(j & 3) + 8*(j >> 2)}\ns_add_u32 s{40+j}, s{40+j}, s14\ns_add_u32 s{48+j}, s{40+j}, s15")
    def loads():
        for j in range(16):
            k(f"buffer_load_dword v{16+j}, v6, s[8:11], s{40+j} offen")
    k(f"{LKV}:\nv_and_b32 v6, 7, v2\nv_lshlrev_b32 v6, 2, v6\nv_lshl_add_u32 v6, v5, 5, v6")
    offs()
    k("s_mov_b32 exec_lo, 0x00ff00ff\ns_mov_b32 exec_hi, 0x00ff00ff")
    loads()
    k("s_not_b64 exec, exec\ns_mov_b32 s8, s30\ns_mov_b32 s9, s31")
    loads()
    k(f"s_mov_b64 exec, -1\ns_branch {LT}")
    k(f"{LP}:\nv_mul_lo_u32 v6, v5, s13\nv_lshl_add_u32 v6, v2, 2, v6")
    offs()
    loads()
    k(f"{LT}:\nv_mov_b32 v8, 0\nv_mov_b32 v9, 0")
    for i in range(2):
        k(f"s_waitcnt vmcnt({8 if i == 0 else 2})")
        for c in range(2):
            for p in range(4):
                k(f"v_perm_b32 v{32+8*i+4*c+p}, v{16+8*i+2*p+1}, v{16+8*i+2*p}, s{18+c}")
            k(f"buffer_store_dwordx4 {vr(32+8*i+4*c)}, v7, s[4:7], s{16+i} offen offset:{16*c}")
    k(f"s_cmp_eq_u32 s22, 0\ns_cbranch_scc1 {LE}")
    for i in range(2):
        for p in range(4):
            for c in range(2):
                k(f"v_dot2c_f32_bf16 v{8+c}, s23, v{32+8*i+4*c+p}")
    k(f"""
    v_lshlrev_b32 v10, 3, v0
    v_and_b32 v11, 31, v0
    s_lshl_b32 s14, s12, 6
    v_lshlrev_b32 v12, 1, v11
    ds_write_b64 v10, v[8:9]
    buffer_load_ushort v50, v12, s[60:63], s14 offen
    v_lshlrev_b32 v10, 11, v4
    v_lshl_add_u32 v10, v11, 2, v10
    s_waitcnt lgkmcnt(0)
    s_barrier
    s_cmp_lg_u32 s3, 0
    s_cbranch_scc1 {LE}
    """)
    for r in range(16):
        k(f"ds_read_b32 v{16+r}, v10 offset:{128*r}")
    k("v_lshlrev_b32 v3, 4, v0\nv_cmp_eq_u32 vcc, 0, v4\ns_waitcnt lgkmcnt(0)")
    for st in (8, 4, 2, 1):
        for r in range(st):
            k(f"v_add_f32 v{16+r}, v{16+r}, v{16+r+st}")
    k(f"""
    v_mov_b32 v17, v16
    s_nop 1
    v_permlane32_swap_b32 v16, v17
    s_nop 1
    v_add_f32 v16, v16, v17
    v_cvt_pk_bf16_f32 v48, v16, v16
    v_and_b32 v49, 0xffff0000, v48
    v_sub_f32 v49, v16, v49
    v_cvt_pk_bf16_f32 v49, v49, v49
    v_mov_b32 v51, 0
    s_waitcnt vmcnt(0)
    v_lshl_or_b32 v50, v50, 16, v50
    v_cndmask_b32 v48, 0, v48, vcc
    v_cndmask_b32 v49, 0, v49, vcc
    v_cndmask_b32 v50, 0, v50, vcc
    buffer_store_dwordx4 v[48:51], v3, s[4:7], s22 offen
    s_endpgm
    """)
    k(f"{LX}:")
    k.srd(8, 24, 2048*512*2)
    k(f"""
    s_sub_u32 s13, s2, {xbase}
    s_lshr_b32 s13, s13, 3
    s_and_b32 s14, s2, 7
    s_lshl_b32 s14, s14, 3
    s_add_u32 s13, s13, s14                     ; tb
    s_lshr_b32 s14, s3, 2
    v_and_b32 v1, 7, v0
    s_and_b32 s15, s3, 3
    s_lshl_b32 s15, s15, 3
    v_add_u32 v1, s15, v1
    v_bfe_u32 v2, v0, 3, 3
    v_lshlrev_b32 v3, 10, v1
    v_lshl_add_u32 v3, v2, 5, v3
    s_lshl_b32 s16, s13, 15
    s_lshl_b32 s17, s14, 9
    s_add_u32 s16, s16, s17
    buffer_load_dwordx4 v[16:19], v3, s[8:11], s16 offen
    buffer_load_dwordx4 v[20:23], v3, s[8:11], s16 offen offset:16
    buffer_load_dwordx4 v[24:27], v3, s[8:11], s16 offen offset:256
    buffer_load_dwordx4 v[28:31], v3, s[8:11], s16 offen offset:272
    v_lshlrev_b32 v4, 10, v2
    v_lshl_add_u32 v4, v1, 4, v4
    s_lshl_b32 s17, s13, 15
    s_lshl_b32 s18, s14, 14
    s_add_u32 s17, s17, s18
    s_add_u32 s17, s17, {X0P}
    s_add_u32 s18, s17, 8192
    v_mov_b32 v32, 0
    v_mov_b32 v33, 0
    v_lshrrev_b32 v5, 1, v2
    v_lshlrev_b32 v5, 10, v5
    v_lshl_add_u32 v5, v1, 4, v5
    v_and_b32 v6, 1, v2
    v_lshl_add_u32 v5, v6, 3, v5
    s_lshl_b32 s15, s13, 12
    s_lshl_b32 s16, s14, 9
    s_add_u32 s15, s15, s16
    s_add_u32 s15, s15, {STA}
    v_mov_b32 v36, -1
    v_mov_b32 v37, -1
    v_mov_b32 v38, -1
    v_mov_b32 v39, -1
    v_lshlrev_b32 v7, 4, v0
    v_and_b32 v8, 0x70, v7
    s_lshl_b32 s40, s13, 15
    s_add_u32 s40, s40, {OP}
    s_add_u32 s41, s40, 8192
    s_add_u32 s42, s40, 16384
    s_add_u32 s43, s40, 24576
    s_lshl_b32 s44, s13, 7
    s_add_u32 s44, s44, {KMAX}
    s_cmp_lg_u32 s3, 0
    s_cselect_b32 s44, 0x7ff00000, s44
    buffer_store_dwordx4 v[36:39], v7, s[4:7], s40 offen sc1
    buffer_store_dwordx4 v[36:39], v7, s[4:7], s41 offen sc1
    buffer_store_dwordx4 v[36:39], v7, s[4:7], s42 offen sc1
    buffer_store_dwordx4 v[36:39], v7, s[4:7], s43 offen sc1
    buffer_store_dwordx4 v[36:39], v8, s[4:7], s44 offen sc1
    s_waitcnt vmcnt(7)
    v_swap_b32 v18, v20
    v_swap_b32 v19, v21
    buffer_store_dwordx4 v[16:19], v4, s[4:7], s17 offen
    buffer_store_dwordx4 v[20:23], v4, s[4:7], s17 offen offset:512
    s_waitcnt vmcnt(7)
    v_swap_b32 v26, v28
    v_swap_b32 v27, v29
    buffer_store_dwordx4 v[24:27], v4, s[4:7], s18 offen
    buffer_store_dwordx4 v[28:31], v4, s[4:7], s18 offen offset:512
    """)
    for r in range(16, 32):
        k(f"v_dot2c_f32_bf16 v32, s23, v{r}\nv_dot2c_f32_bf16 v33, v{r}, v{r}")
    k("""
    s_nop 3
    buffer_store_dwordx2 v[32:33], v5, s[4:7], s15 offen
    s_endpgm
    """)
    return k
```

```python
from gen_common import *
import math
QSCALE = 0.25*math.log2(math.e)
C1 = -2*math.sqrt(2/math.pi)*math.log2(math.e)
C2 = C1*0.044715
D, R = int(os.environ.get('RD', 3)), 6
SI = int(os.environ.get('SI', 3))
SCH = os.environ.get('SCH', 'sc1')
PW = int(os.environ.get('PW', 1))
PF = int(os.environ.get('PF', 1))

def gen_ffn(name):
    k = K(name, 256, 256, R*16384, 208)
    k.agpr = 96
    k(f"""
    s_cmp_ge_u32 s2, 256
    s_cbranch_scc1 {name}_end
    s_load_dwordx2 s[20:21], s[0:1], {A_WS}
    s_load_dwordx4 s[24:27], s[0:1], {A_B2}
    s_cmp_ge_u32 s2, 240
    s_cbranch_scc1 {name}_f2
    """)
    gen_ring(name, 'f1', k)
    k(f"{name}_f2:")
    gen_ring(name, 'f2', k)
    k(f"{name}_end:\ns_endpgm")
    return k

def gen_ring(name, kind, fk=None):
    final = kind == 'f2'
    f1 = kind == 'f1'
    XP, WP, nkb = {'q': (X0P, WQ_P, 32), 'wo': (OP, WO_P, 32), 'f2': (HP, W2_P, 86), 'f1': (X1P, W1_P, 32)}[kind]
    grid = 240 if f1 else 256
    lds = {'q': R*16384 + 4096, 'wo': R*16384, 'f2': R*16384, 'f1': R*12288}[kind]
    k = fk
    k(f"""
    v_lshrrev_b32 v2, 6, v0
    v_and_b32 v3, 63, v0
    v_readfirstlane_b32 s3, v2                  ; wave
    v_lshlrev_b32 v1, 4, v3                     ; lane*16
    v_lshrrev_b32 v4, 5, v3                     ; hf
    v_and_b32 v5, 31, v3                        ; o
    s_and_b32 s16, s2, 7
    s_lshl_b32 s35, s3, 12
    s_lshl_b32 s36, s3, 10
    """)
    if f1:
        k(f"""
        s_lshl_b32 s16, s16, 1
        s_bfe_u32 s18, s2, 0x10003
        s_add_u32 s16, s16, s18
        s_lshl_b32 s16, s16, 2
        s_add_u32 s16, s16, s3
        s_lshr_b32 s17, s2, 4                   ; n group
        s_lshl_b32 s18, s18, 2
        s_add_u32 s34, s17, s18
        s_and_b32 s34, s34, 7
        s_lshl_b32 s34, s34, 12                 ; rotation
        s_mul_i32 s17, s17, 3                   ; nb0
        s_lshl_b32 s40, s16, 15
        s_add_u32 s40, s40, {XP}
        s_lshl_b32 s41, s17, 15
        s_add_u32 s41, s41, s36
        s_add_u32 s41, s41, {WP}
        v_mov_b32 v6, v1
        v_add_u32 v7, {3*12288}, v1
        """)
    else:
        k(f"""
        s_lshr_b32 s19, s2, 3                   ; local
        s_and_b32 s18, s19, 3
        s_lshl_b32 s16, s16, 2
        s_add_u32 s16, s16, s18
        s_lshr_b32 s17, s19, 2                  ; n pair
        """)
        if nkb == 32:
            k("s_lshl_b32 s18, s18, 1\ns_add_u32 s34, s17, s18\ns_and_b32 s34, s34, 7")
        else:
            k("s_mul_i32 s34, s17, 21\ns_lshr_b32 s34, s34, 3\ns_mul_i32 s18, s18, 5\ns_add_u32 s34, s34, s18\ns_sub_u32 s18, s34, 21\ns_cmp_ge_u32 s34, 21\ns_cselect_b32 s34, s18, s34")
        k(f"""
        s_lshl_b32 s34, s34, 12                 ; rotation
        s_and_b32 s18, s3, 1
        s_lshr_b32 s19, s3, 1
        s_mov_b32 s38, s17
        s_cmp_lt_u32 s3, 2
        s_cselect_b32 s40, s16, s17
        s_mov_b32 s41, {WP}
        s_cselect_b32 s41, {XP}, s41
        s_lshl_b32 s40, s40, 1
        s_add_u32 s40, s40, s18
        s_mul_i32 s40, s40, {nkb*1024}
        s_add_u32 s40, s40, s41
        s_lshl_b32 s16, s16, 1
        s_add_u32 s16, s16, s18
        s_lshl_b32 s17, s17, 1
        s_add_u32 s17, s17, s19
        s_lshl_b32 s18, s18, 12
        s_lshl_b32 s19, s19, 12
        s_add_u32 s19, s19, 8192
        v_add_u32 v6, s18, v1
        v_add_u32 v8, s19, v1
        s_lshl_b32 s44, s16, 15
        s_lshl_b32 s45, s17, 11
        s_add_u32 s44, s44, s45
        """)
    k("s_waitcnt lgkmcnt(0)")
    if f1: k.stamp(0)
    k.srd(4, 20, WS_END)
    if kind == 'f2':
        k.srd(8, 24, 1024)
        if final: k.srd(12, 26, 2048*1024)
    if kind == 'q':
        k(f"s_cmp_ge_u32 s38, 4\ns_cbranch_scc1 {name}_v")
        body(k, kind, nkb, final, 'k')
        k(f"{name}_end:\ns_endpgm\n{name}_v:")
        body(k, kind, nkb, final, 'v')
        k("s_endpgm")
    else:
        body(k, kind, nkb, final, False)
    return k

def body(k, kind, nkb, final, kv):
    f1 = kind == 'f1'
    SLOT = 12288 if f1 else 16384
    KVB = R*SLOT
    nfull = nkb//4
    nst = (nkb + 3)//4
    G = lambda s: 4 if s < nfull else nkb - 4*nfull
    nr = 3 if (f1 or kv) else 2
    RB = 64 if (f1 or kv) else 48
    E = 160
    ar = lambda a: f"a[{a}:{a+3}]"
    seq = []
    last = {}
    def wait_for(tag):
        k(f"s_waitcnt vmcnt({len(seq)-1-seq.index(tag)})")
    if not f1:
        k(f"v_add_u32 v7, {3*SLOT}, v6\nv_add_u32 v9, {3*SLOT}, v8")
    if kv:
        k(f"""
        v_and_b32 v15, 3, v3
        v_lshrrev_b32 v2, 2, v3
        v_lshlrev_b32 v2, 9, v2
        v_lshl_add_u32 v2, v15, 4, v2           ; (l>>3)*1024 + hf'*512 + (l&3)*16
        s_lshl_b32 s41, s38, 6
        s_lshl_b32 s42, s3, 13
        s_add_u32 s42, s42, s41
        s_add_u32 m0, s36, {KVB}
        s_add_u32 s42, s42, {WKV_P}
        buffer_load_dwordx4 v2, s[4:7], s42 offen lds
        v_lshlrev_b32 v15, 4, v15
        v_lshl_add_u32 v3, v4, 9, v15           ; hf*512 + (l&3)*16
        v_lshl_add_u32 v15, v4, 6, v15
        v_add_u32 v15, {KVB}, v15
        s_lshr_b32 s39, s34, 3
        s_lshr_b32 s52, s3, 1
        s_lshl_b32 s53, s52, 8
        s_lshl_b32 s52, s52, 11
        v_add_u32 v15, s53, v15
        """)
        for j in range(4):
            k(f"v_subrev_u32 v{200+j}, s52, v{6+j}\nv_add_u32 v{6+j}, s52, v{6+j}")
        seq.append('kvw')
    def issue(s):
        sb = (s % R)*SLOT
        rot = "s34" if s < nfull else str(nfull*4096)
        C = []
        if f1:
            for j in range(3):
                C.append((f"s_add_u32 s43, s41, {rot}\n" if j == 0 else "") + f"s_add_u32 m0, s36, {sb + j*4096}\ns_add_u32 s42, s43, {j*32768}\nbuffer_load_dwordx4 v1, s[4:7], s42 offen lds")
            for i in range(4):
                C.append((f"s_add_u32 s42, s40, {rot}\n" if i == 0 else "") + f"buffer_load_dwordx4 {ar(16*(s%R)+4*i)}, v1, s[4:7], s42 offen offset:{1024*i}")
        else:
            for i in range(G(s)):
                C.append((f"s_add_u32 m0, s35, {sb}\ns_add_u32 s42, s40, {rot}\n" if i == 0 else "") + f"buffer_load_dwordx4 v1, s[4:7], s42 offen offset:{1024*i} {SCH} lds")
        if s < nfull - 1:
            C[-1] += "\ns_add_u32 s34, s34, 4096\n" + ("s_and_b32 s34, s34, 0x7fff" if nkb == 32 else f"s_cmp_eq_u32 s34, {nfull*4096}\ns_cselect_b32 s34, 0, s34")
        for i in range(len(C)): seq.append((s, i))
        last[s] = seq[-1]
        return C
    def issue_epi():
        def ld(n, reg, voff, srd, soff, off):
            k(f"buffer_load_dword{'x%d' % n} {vr(reg, n)}, v{voff}, {srd}, s{soff} offen offset:{off}"); seq.append(('e', len(seq)))
        if kind in ('q', 'f1'):
            k(f"""
            s_lshl_b32 s46, s16, 12
            s_add_u32 s46, s46, {STA if kind == 'q' else STB}
            s_lshl_b32 s47, s17, 10
            s_add_u32 s47, s47, {WX + (17*1024 if f1 else 0)}
            """)
            for q in range(4): ld(4, E+4*q, 1, "s[4:7]", 46, 1024*q)
            for j in range(3 if f1 else 1): ld(4, E+16+4*j, 1, "s[4:7]", 47, 1024*j)
            if kv:
                k(f"s_add_u32 s48, s41, {WX + 16*1024}\ns_cmp_ge_u32 s3, 2\ns_cselect_b32 s48, 0x7ff00000, s48")
                ld(4, E+20, 3, "s[4:7]", 48, 0)
        else:
            k(f"s_add_u32 s45, s44, {X0P if kind == 'wo' else X1P}")
            for q in range(2): ld(4, E+4*q, 1, "s[4:7]", 45, 1024*q)
        if kind == 'f2':
            k(f"v_lshlrev_b32 v3, 3, v4\ns_lshl_b32 s47, s17, 6")
            for q in range(4): ld(2, E+8+2*q, 3, "s[8:11]", 47, 16*q)
        last['e'] = seq[-1]
    def init_acc():
        wait_for(last['e'])
        unp = lambda d, s, i: (f"v_lshlrev_b32 v{d}, 16, v{s+i//2}" if i % 2 == 0 else f"v_and_b32 v{d}, 0xffff0000, v{s+i//2}")
        if kind in ('q', 'f1'):
            emit_stats(k, E, 10, 11, 12, 13)
            B = E + 28
            k(f"""
            v_mul_f32 v12, v13, v11             ; sqrt(var+eps)
            v_cvt_pk_bf16_f32 v2, -v10, -v10
            v_cvt_pk_bf16_f32 v3, v12, v12
            v_cvt_pk_bf16_f32 v13, v11, v11
            v_and_b32 v2, 0xffff0000, v2
            v_and_b32 v3, 0xffff0000, v3
            v_and_b32 v13, 0xffff0000, v13
            v_sub_f32_e64 v2, -v10, v2
            v_sub_f32 v3, v12, v3
            v_sub_f32 v13, v11, v13
            v_cvt_pk_bf16_f32 v{B}, -v10, v2
            v_cvt_pk_bf16_f32 v{B+1}, -v10, v2
            v_cvt_pk_bf16_f32 v{B+2}, v12, v3
            v_cvt_pk_bf16_f32 v{B+3}, v11, v13
            s_nop 1
            """)
            for j in range(3 if f1 else 1):
                k(f"{MFMA} {vr(16+16*j,16)}, {vr(E+16+4*j)}, {vr(B)}, {vr(16+16*j,16)}")
            if kv == 'k': k(f"{MFMA} {vr(32,16)}, {vr(E+20)}, {vr(B)}, {vr(32,16)}")
            if kv == 'v':
                k(f"""
                {MFMA} {vr(32,16)}, {vr(B)}, {vr(E+20)}, {vr(32,16)}
                v_cmp_eq_u32 vcc, 0, v4
                v_mov_b32 v{E+24}, 0
                v_mov_b32 v{E+25}, 0
                v_mov_b32 v{E+26}, 0
                v_mov_b32 v{E+27}, 0x3f803f80
                v_cndmask_b32 v{E+27}, 0, v{E+27}, vcc
                s_nop 1
                {MFMA} {vr(48,16)}, {vr(B)}, {vr(E+24)}, 0
                """)
        else:
            for i in range(16):
                k(unp(E+16+i, E, i))
            if kind == 'f2':
                for i in range(16):
                    k(unp(2+i % 2, E+8, i)); k(f"v_add_f32 v{E+16+i}, v{E+16+i}, v{2+i%2}")
    def reads(s):
        h = 1 if (s % R) >= 3 else 0
        so = ((s % R) % 3)*SLOT
        b = RB + (s & 1)*16*nr
        Rd = []
        for i in range(G(s)):
            if f1:
                for j in range(3):
                    Rd.append((i, f"ds_read_b128 {vr(b+16*j+4*i)}, v{6+h} offset:{so+4096*j+1024*i}"))
            else:
                for j, a in enumerate((6, 8)):
                    if kv and i >= 2: a += 194
                    Rd.append((i, f"ds_read_b128 {vr(b+16*j+4*i)}, v{a+h} offset:{so+1024*i}"))
                if kv and i < 2:
                    Rd.append((i, ("v_add_u32 v14, s39, v15\ns_add_u32 s39, s39, 512\ns_and_b32 s39, s39, 0xfff\n" if i == 0 else "") + f"ds_read_b128 {vr(b+32+4*i)}, v14 offset:{128*i}"))
        return Rd
    def mfmas(s):
        b = RB + (s & 1)*16*nr
        M = []
        for i in range(G(s)):
            c = lambda a: ("0" if s == 0 and i == 0 else vr(a, 16))
            if f1:
                for j in range(3):
                    M.append((i, f"{MFMA} {vr(16+16*j,16)}, {vr(b+16*j+4*i)}, {ar(16*(s%R)+4*i)}, {c(16+16*j)}"))
            else:
                M.append((i, f"{MFMA} {vr(16,16)}, {vr(b+16+4*i)}, {vr(b+4*i)}, {c(16)}"))
                if kv == 'k' and i < 2: M.append((i, f"{MFMA} {vr(32,16)}, {vr(b+32+4*i)}, {vr(b+4*i)}, {c(32)}"))
                if kv == 'v' and i < 2: M.append((i, f"{MFMA} {vr(32,16)}, {vr(b+4*i)}, {vr(b+32+4*i)}, {c(32)}"))
        return M
    npf = [0]
    def prefetch(n):
        C = []
        for i in range(n):
            C.append(f"buffer_load_dwordx4 {vr(204)}, v1, s[12:15], s48 offen\ns_add_u32 s48, s48, {120*1024}")
            seq.append(('pf', npf[0])); npf[0] += 1
        return C
    n = k.name
    def poll(t, mask, pre=""):
        k(f"""
        s_mov_b32 s46, 0x1000
        s_mov_b64 exec, {hex(mask)}
        {pre}
        {n}_pl{t}:
        buffer_load_dword v10, v2, s[4:7], s45 offen sc1
        s_sub_u32 s46, s46, 1
        s_waitcnt vmcnt(0)
        s_cbranch_scc1 {n}_pg{t}
        v_cmp_ne_u32 vcc, 0, v10
        s_nop 4
        s_and_b32 s48, vcc_lo, s47
        s_cbranch_scc1 {n}_pl{t}
        {n}_pg{t}:
        s_mov_b64 exec, -1
        """)
    if kind == 'f2':
        k(f"""
        s_mov_b64 vcc, 0
        s_cmp_ge_u32 s3, 2
        s_cbranch_scc1 {n}_np
        s_lshl_b32 s45, s16, 11
        s_add_u32 s45, s45, {QP}
        v_lshlrev_b32 v2, 7, v3
        s_lshr_b32 s47, s34, 12
        s_mul_i32 s47, s47, 43
        s_lshr_b32 s47, s47, 6
        s_lshl_b32 s47, 7, s47
        s_lshr_b32 s48, s47, 14
        s_or_b32 s47, s47, s48
        s_and_b32 s47, s47, 0x3fff
        """)
        poll(0, 0x7fff, "s_waitcnt vmcnt(0)" if PW else "")
        k(f"{n}_np:")
        k.stamp(4)
    for s in range(D):
        for c in issue(s): k(c)
    if kind == 'f2':
        k(f"s_cbranch_vccz {n}_nq\ns_mov_b32 s47, -1")
        poll(1, 0x7fff)
        k(f"{n}_nq:")
    issue_epi()
    if kind == 'f2':
        for i in range(4): k(f"v_mov_b32 v{204+i}, -1")
        k(f"s_add_u32 s45, s44, {OP}")
        for q in range(2):
            k(f"buffer_store_dwordx4 {vr(204)}, v1, s[4:7], s45 offen offset:{1024*q} sc1"); seq.append(('po', q))
        k(f"""
        s_lshl_b32 s45, s16, 7
        s_add_u32 s45, s45, {KMAX}
        s_cmp_lg_u32 s17, 0
        s_cselect_b32 s45, 0x7ff00000, s45
        v_and_b32 v2, 0x70, v1
        buffer_store_dwordx4 {vr(204)}, v2, s[4:7], s45 offen sc1
        """); seq.append(('po', 2))
    if f1:
        k.srd(12, 20, KMAX)
        k(f"s_lshr_b32 s48, s2, 3\ns_lshl_b32 s48, s48, 12\ns_add_u32 s48, s48, s36\ns_add_u32 s48, s48, {WX}")
    prev = []
    for s in range(nst + 1):
        Rd, C = [], []
        if s < nst:
            wait_for(last[s])
            k("s_barrier")
            Rd = reads(s)
            C = issue(s + D) if s + D < nst else (prefetch(-(-17//D)) if f1 and PF else [])
        else:
            k.stamp(1 if f1 else 6)
        M = mfmas(s-1) if s else []
        per = -(-len(Rd)//len(M)) if M else len(Rd)
        nrd, done = 0, -1
        for i in range(max(len(M), len(C), 1)):
            if i < len(M):
                if M[i][0] > done:
                    done = M[i][0]
                    k(f"s_waitcnt lgkmcnt({min(15, nrd + sum(1 for r in prev if r[0] > done))})")
                k(M[i][1])
            for r in Rd[nrd:nrd+per]: k(r[1])
            nrd = min(len(Rd), nrd + per)
            if i < len(C): k(C[i])
        assert nrd == len(Rd)
        prev = Rd
        if s == SI: init_acc()
        if s == 0 and not f1: k.stamp(5)
    T = RB
    if kind == 'q':
        k(f"v_mul_f32 v12, {hex(f2u(QSCALE))}, v11\ns_add_u32 s45, s44, {QP}\ns_and_b32 s52, s3, 1\ns_lshl_b32 s52, s52, 12\nv_add_u32 v14, s52, v1\ns_nop 13")
        nq = 1 if kv == 'k' else 4
        L = k.lab("x")
        k(f"s_cmp_lt_u32 s3, 2\ns_cbranch_scc1 {L}")
        for q in range(nq): k(f"ds_write_b128 v14, {vr(32+4*q)} offset:{3*SLOT+1024*q}")
        k(f"{L}:")
        for i in range(16): k(f"v_mul_f32 v{16+i}, v{16+i}, v12")
    elif f1:
        k(f"""
        s_barrier
        v_mov_b32 v13, v12
        v_mul_f32 v14, {hex(f2u(C1))}, v11
        v_mul_f32 v2, v11, v11
        v_mul_f32 v8, {hex(f2u(0.044715))}, v14
        v_mov_b32 v15, v14
        v_mul_f32 v8, v8, v2
        s_mul_i32 s49, s16, 86
        s_lshl_b32 s51, s17, 1
        s_add_u32 s49, s49, s51
        v_mov_b32 v9, v8
        s_lshl_b32 s49, s49, 10
        s_add_u32 s49, s49, {HP}
        s_add_u32 s50, s49, 2048
        s_add_u32 s51, s49, 4096
        s_cmp_eq_u32 s17, 42
        s_cselect_b32 s50, 0x7ff00000, s50
        s_cselect_b32 s51, 0x7ff00000, s51
        s_nop 7
        """)
        for g in range(6):
            P = [(16+8*g+2*p, T+16*(g & 1)+2*p) for p in range(4)]
            for a, t in P: k(f"v_pk_mul_f32 {vr(t,2)}, {vr(a,2)}, {vr(a,2)}")
            for a, t in P: k(f"v_pk_fma_f32 {vr(t,2)}, {vr(t,2)}, v[8:9], v[14:15]")
            for a, t in P: k(f"v_pk_mul_f32 {vr(t,2)}, {vr(a,2)}, {vr(t,2)}")
            for a, t in P: k(f"v_exp_f32 v{t}, v{t}\nv_exp_f32 v{t+1}, v{t+1}")
            for a, t in P: k(f"v_pk_fma_f32 {vr(t,2)}, {vr(t,2)}, v[12:13], v[12:13]")
            for a, t in P: k(f"v_rcp_f32 v{t}, v{t}\nv_rcp_f32 v{t+1}, v{t+1}")
            for a, t in P: k(f"v_pk_mul_f32 {vr(t,2)}, {vr(a,2)}, {vr(t,2)}")
            o = T + 32 + 4*g
            for p, (a, t) in enumerate(P): k(f"v_cvt_pk_bf16_f32 v{o+p}, v{t}, v{t+1}")
            k(f"buffer_store_dwordx4 {vr(o)}, v1, s[4:7], s{49+g//2} offen offset:{1024*(g&1)} sc1")
        k.stamp(2)
        k(f"""
        s_lshr_b32 s49, s2, 4
        s_lshl_b32 s49, s49, 7
        s_lshl_b32 s50, s16, 11
        s_add_u32 s49, s49, s50
        s_add_u32 s49, s49, {QP}
        v_mov_b32 v2, 0
        s_mov_b64 exec, 1
        s_waitcnt vmcnt(0)
        buffer_store_dword v2, v2, s[4:7], s49 offen sc1
        s_mov_b64 exec, -1
        """)
        k.stamp(3)
        return
    else:
        k(f"s_add_u32 s45, s44, {X1P if kind == 'wo' else X0P}")
        if final:
            k(f"""
            v_lshlrev_b32 v6, 10, v5
            v_lshl_add_u32 v6, v4, 4, v6            ; o*1024 + hf*16
            s_lshl_b32 s48, s16, 15
            s_lshl_b32 s47, s17, 6
            s_add_u32 s48, s48, s47
            """)
        if True:
            k(f"""
            v_lshlrev_b32 v7, 4, v5
            v_lshl_add_u32 v7, v4, 2, v7        ; o*16 + hf*4
            s_lshl_b32 s46, s16, 12
            s_bfe_u32 s47, s17, 0x20001
            s_lshl_b32 s47, s47, 10
            s_add_u32 s46, s46, s47
            s_lshr_b32 s47, s17, 3
            s_lshl_b32 s47, s47, 9
            s_add_u32 s46, s46, s47
            s_and_b32 s47, s17, 1
            s_lshl_b32 s47, s47, 3
            s_add_u32 s46, s46, s47
            s_add_u32 s46, s46, {STB if kind == 'wo' else STA}
            """)
        k("s_nop 12")
        for i in range(16): k(f"v_add_f32 v{16+i}, v{16+i}, v{E+16+i}")
    for p in range(8):
        k(f"v_cvt_pk_bf16_f32 v{T+p}, v{16+2*p}, v{17+2*p}")
    k(f"buffer_store_dwordx4 {vr(T)}, v1, s[4:7], s45 offen")
    k(f"buffer_store_dwordx4 {vr(T+4)}, v1, s[4:7], s45 offen offset:1024")
    if final:
        for p in range(8): k(f"v_mov_b32 v{T+8+p}, v{T+p}")
        k(f"""
        v_permlane32_swap_b32 v{T+8}, v{T+10}
        v_permlane32_swap_b32 v{T+9}, v{T+11}
        s_nop 0
        v_permlane32_swap_b32 v{T+12}, v{T+14}
        v_permlane32_swap_b32 v{T+13}, v{T+15}
        s_nop 1
        buffer_store_dwordx4 {vr(T+8)}, v6, s[12:15], s48 offen
        buffer_store_dwordx4 {vr(T+12)}, v6, s[12:15], s48 offen offset:32
        """)
    if kind != 'q':
        emit_stats_out(k, 16, 12, 13, 7, 46)
    k.stamp(7)
    if kv:
        k(f"s_waitcnt lgkmcnt(0)\ns_barrier\ns_cmp_ge_u32 s3, 2\ns_cbranch_scc1 {k.name}_end")
        for q in range(nq): k(f"ds_read_b128 {vr(16+4*q)}, v14 offset:{3*SLOT+1024*q}")
        k("s_waitcnt lgkmcnt(0)")
        for i in range(4*nq): k(f"v_add_f32 v{32+i}, v{32+i}, v{16+i}")
    if kv == 'k':
        for i in range(4): k(f"v_mul_f32 v{32+i}, v{32+i}, v11")
        k(f"""
        v_cvt_pk_bf16_f32 v{T+8}, v32, v33
        v_cvt_pk_bf16_f32 v{T+9}, v34, v35
        v_mul_f32 v12, v32, v32
        v_fma_f32 v12, v33, v33, v12
        v_fma_f32 v12, v34, v34, v12
        v_fma_f32 v12, v35, v35, v12
        v_lshlrev_b32 v6, 4, v5
        s_lshl_b32 s45, s16, 10
        s_and_b32 s46, s38, 1
        s_lshl_b32 s46, s46, 9
        s_add_u32 s45, s45, s46
        s_lshr_b32 s46, s38, 1
        s_lshl_b32 s46, s46, 3
        s_add_u32 s45, s45, s46
        s_add_u32 s45, s45, {KP}
        buffer_store_dwordx2 {vr(T+8,2)}, v6, s[4:7], s45 offen
        """)
        dpp_max(k, 12, 30, 31)
        k(f"""
        v_mov_b32 v13, s30
        v_mov_b32 v6, 0
        s_lshl_b32 s45, s16, 4
        s_lshl_b32 s46, s38, 2
        s_add_u32 s45, s45, s46
        s_add_u32 s45, s45, {KMAX}
        buffer_store_dword v13, v6, s[4:7], s45 offen
        """)
    if kv == 'v':
        for i in range(16): k(f"v_mul_f32 v{32+i}, v{32+i}, v{48+i}")
        for p in range(8): k(f"v_cvt_pk_bf16_f32 v{T+8+p}, v{32+2*p}, v{33+2*p}")
        k(f"""
        s_lshl_b32 s46, s38, 2
        s_sub_u32 s46, s46, 16
        v_and_b32 v6, 3, v5
        v_add_u32 v6, s46, v6
        v_bfe_u32 v7, v5, 2, 1
        v_lshl_add_u32 v6, v7, 4, v6
        v_and_b32 v7, 27, v6
        v_cmp_eq_u32 vcc, 16, v7
        v_mov_b32 v8, 0x3f803f80
        v_lshlrev_b32 v6, 4, v6
        v_lshl_add_u32 v6, v4, 9, v6
        v_cndmask_b32 v8, 0, v8, vcc
        v_cmp_gt_u32 vcc, 4, v5
        s_lshl_b32 s45, s16, 11
        s_add_u32 s45, s45, {VP}
        s_nop 0
        """)
        for p in range(8): k(f"v_cndmask_b32 v{T+8+p}, v8, v{T+8+p}, vcc")
        k(f"""
        v_cmp_gt_u32 vcc, 8, v5
        s_and_saveexec_b64 s[30:31], vcc
        buffer_store_dwordx4 {vr(T+8)}, v6, s[4:7], s45 offen
        buffer_store_dwordx4 {vr(T+12)}, v6, s[4:7], s45 offen offset:1024
        """)
```

```python
import sys
from gen_common import *
from gen_prep import gen_prep
from gen_ring import gen_ffn
from gen_attn import gen_attn
ref = open(f"cdna_kernels/{NAME}.s.ref").read().split("\n")
header = "\n".join(l for l in ref[:14]) + "\n"
prep = gen_prep()
attn = gen_attn()
ffn = gen_ffn("ffn_kernel")
ks = [prep, attn, ffn]
launches = [prep, attn, ffn, attn, ffn]
if os.environ.get("NOPS"):
    e = K("nop_kernel", 256, 256, 0, 32); e("s_endpgm"); ks.append(e)
    launches = [x for l in launches for x in (l, e)]
out = sys.argv[1] if len(sys.argv) > 1 else f"cdna_kernels/{NAME}.s"
open(out, "w").write(assemble(ks, launches, header))
```

```python
from gen_common import *
import math
from gen_ring import gen_ring
QSCALE = 0.25*math.log2(math.e)
THR = 60.0

SC = os.environ.get('SC', 'sc1')
SCK = os.environ.get('SCK', 'sc1')
PE = int(os.environ.get('PE', 1))
PSW = int(os.environ.get('PSW', 55))
PF_END = int(os.environ.get('PF_END', WQ_P))
def gen_attn():
    OL = 8*3*2304
    k = K("attn_kernel", 256, 512, 98304, 192)
    k.agpr = 64
    XT = int(os.environ.get("XT", 0))
    n = k.name
    Q, O, S, P, KV, M = 16, 32, 96, 128, 136, 160
    def Kb(b): return KV + 12*b
    def Vb(b, h): return KV + 12*b + 4 + 4*h
    k(f"""
    s_mov_b32 s59, 0
    {n}_main:
    s_cmp_ge_u32 s2, 256
    s_cbranch_scc1 {n}_end
    s_load_dwordx2 s[20:21], s[0:1], {A_WS}
    v_lshrrev_b32 v2, 6, v0
    v_and_b32 v3, 63, v0
    v_readfirstlane_b32 s3, v2                  ; wave
    v_lshlrev_b32 v1, 4, v3                     ; lane*16
    v_lshlrev_b32 v2, 2, v3                     ; lane*4
    s_and_b32 s16, s2, 7
    s_lshl_b32 s16, s16, 3
    s_lshr_b32 s17, s2, 5
    s_add_u32 s16, s16, s17                     ; tb
    s_bfe_u32 s17, s2, 0x20003
    {"s_lshr_b32 s16, s2, 2" if XT else ""}
    {"s_and_b32 s17, s2, 3" if XT else ""}
    s_mov_b32 s54, s17
    s_lshl_b32 s38, s17, 2
    s_and_b32 s39, s3, 3
    s_add_u32 s38, s38, s39
    s_lshr_b32 s39, s3, 2                       ; k half
    s_lshl_b32 s52, s38, 15
    s_lshl_b32 s44, s39, 12
    s_add_u32 s52, s52, s44
    s_add_u32 s52, s52, {WO_P}
    s_lshl_b32 s53, s17, 13
    s_add_u32 s43, s52, s53
    s_and_b32 s18, s3, 1                        ; g
    s_lshr_b32 s19, s3, 1                       ; kq
    s_lshl_b32 s22, s16, 5
    s_lshl_b32 s17, s17, 3
    s_add_u32 s22, s22, s17
    s_lshl_b32 s17, s18, 2
    s_add_u32 s22, s22, s17
    s_waitcnt lgkmcnt(0)
    """)
    if PSW:
        k(f"s_setprio 1\ns_cmp_lt_u32 s3, 4\ns_cbranch_scc1 {n}_p\ns_setprio 2\n{n}_p:")
    k.srd(4, 20, WS_END)
    k.srd(8, 20, PF_END)
    k(f"s_lshr_b32 s42, s2, 3\ns_lshl_b32 s42, s42, 3\ns_add_u32 s42, s42, s3\ns_lshl_b32 s42, s42, 10\ns_add_u32 s42, s42, {W1_P}")
    KVP, QX, QL, KM = 4096, 36864, 4096, 53248
    XO, WK, ST, B, WXQ, WXK, SEL, KA, QA = 96, 112, 64, 80, 84, 88, 92, 32, 48
    OOB = "0x7ff00000"
    def wq_loads():
        for i in range(16):
            k(f"buffer_load_dwordx4 a[{4*i}:{4*i+3}], v1, s[4:7], s55 offen offset:{1024*(i&3)}" + ("\ns_add_u32 s55, s55, 4096" if i & 3 == 3 else ""))
    k(f"""
    s_add_u32 s24, s22, s19
    s_lshl_b32 s24, s24, 10
    s_add_u32 s24, s24, {QP}
    s_lshl_b32 s56, s3, 12                      ; wave*4096
    s_lshl_b32 s26, s16, 15
    s_add_u32 s26, s26, s56
    s_add_u32 s26, s26, {X0P}
    s_and_b32 s27, s3, 3
    s_lshl_b32 s27, s27, 10
    s_lshl_b32 s28, s16, 12
    s_add_u32 s28, s28, s27
    s_mov_b32 m0, s27
    s_add_u32 s28, s28, {STA}
    s_cmp_ge_u32 s3, 4
    s_cbranch_scc1 {n}_ns
    buffer_load_dwordx4 v1, s[4:7], s28 offen lds
    {n}_ns:
    """)
    for i in range(4): k(f"buffer_load_dwordx4 {vr(XO+4*i)}, v1, s[4:7], s26 offen offset:{1024*i}")
    k(f"""
    v_and_b32 v4, 31, v3
    s_lshl_b32 s27, s54, 8
    v_add_u32 v5, s27, v1
    v_mov_b32 v6, {OOB}
    v_cmp_gt_u32 vcc, 16, v4
    s_add_u32 s27, s56, {WKV_P}
    s_cmp_ge_u32 s54, 2
    s_cselect_b32 s27, {OOB}, s27
    v_cndmask_b32 v5, v6, v5, vcc
    s_cmp_lt_u32 s3, 2
    s_mov_b32 s28, {OOB}
    s_cselect_b32 s28, {WX+16*1024}, s28
    s_lshl_b32 s29, s38, 10
    s_add_u32 s29, s29, {WX}
    s_cmp_lg_u32 s39, 0
    s_cselect_b32 s29, {OOB}, s29
    s_lshl_b32 s55, s38, 15
    s_lshl_b32 s30, s39, 14
    s_add_u32 s55, s55, s30
    s_add_u32 s55, s55, {WQ_P}
    """)
    for i in range(4): k(f"buffer_load_dwordx4 {vr(WK+4*i)}, v5, s[4:7], s27 offen offset:{1024*i}")
    k(f"""
    buffer_load_dwordx4 {vr(WXK)}, v5, s[4:7], s28 offen
    buffer_load_dwordx4 {vr(WXQ)}, v1, s[4:7], s29 offen
    s_add_u32 s30, s56, {OL}
    v_add_u32 v6, s30, v1
    v_add_u32 v7, s56, v1
    s_cmp_lt_u32 s54, 2
    s_cselect_b32 s57, s54, -1
    s_cselect_b32 s58, s54, 7
    s_add_u32 s57, s57, 1
    s_barrier
    s_cmp_gt_u32 s3, s58
    s_cbranch_scc1 {n}_nw
    """)
    wq_loads()
    k(f"s_waitcnt vmcnt(16)\ns_branch {n}_nw2\n{n}_nw:\ns_waitcnt vmcnt(0)\n{n}_nw2:")
    for i in range(4): k(f"ds_write_b128 v6, {vr(XO+4*i)} offset:{1024*i}")
    k(f"s_cmp_ge_u32 s54, 2\ns_cbranch_scc1 {n}_k2\ns_cmp_eq_u32 s54, 0\ns_cbranch_scc1 {n}_k1")
    for i in range(4): k(f"{MFMA} {vr(KA,16)}, {vr(XO+4*i)}, {vr(WK+4*i)}, {vr(KA,16) if i else 0}")
    k(f"s_nop 15\ns_nop 1\nds_write_b128 v7, {vr(KA+8)} offset:{KVP+2048}\nds_write_b128 v7, {vr(KA+12)} offset:{KVP+3072}")
    k(f"s_branch {n}_k4\n{n}_k1:")
    for i in range(4): k(f"{MFMA} {vr(KA,16)}, {vr(WK+4*i)}, {vr(XO+4*i)}, {vr(KA,16) if i else 0}")
    k(f"""
    s_nop 15
    s_nop 1
    {n}_k4:
    ds_write_b128 v7, {vr(KA)} offset:{KVP}
    ds_write_b128 v7, {vr(KA+4)} offset:{KVP+1024}
    {n}_k2:
    s_lshl_b32 s30, s3, 11
    v_add_u32 v14, s30, v1
    s_xor_b32 s30, s3, 1
    s_lshl_b32 s30, s30, 12
    v_add_u32 v15, s30, v14
    s_waitcnt lgkmcnt(0)
    s_barrier
    """)
    k.stamp(0)
    for q in range(4): k(f"ds_read_b128 {vr(ST+4*q)}, v1 offset:{1024*q}")
    k(f"s_cmp_ge_u32 s3, s57\ns_cbranch_scc1 {n}_k8\ns_setprio 3")
    for w in range(1, 8):
        for q in range(2): k(f"ds_read_b128 {vr(96+8*(w-1)+4*q)}, v{15 if w == 1 else 14} offset:{KVP+(4096*w if w > 1 else 0)+1024*q}")
    k(f"""
    s_waitcnt lgkmcnt(14)
    s_branch {n}_k9
    {n}_k8:
    s_cmp_le_u32 s3, s58
    s_cbranch_scc1 {n}_kb
    """)
    wq_loads()
    k(f"""
    {n}_kb:
    s_waitcnt lgkmcnt(0)
    {n}_k9:
    v_cmp_gt_u32 vcc, 32, v3
    v_mov_b32 v{SEL}, 0
    v_mov_b32 v{SEL+1}, 0
    v_mov_b32 v{SEL+2}, 0
    v_mov_b32 v{SEL+3}, 0x3f803f80
    v_cndmask_b32 v{SEL+3}, 0, v{SEL+3}, vcc
    """)
    emit_stats(k, ST, 10, 11, 12, 13)
    k(f"""
    v_mul_f32 v12, v13, v11                     ; sqrt(var+eps)
    v_cvt_pk_bf16_f32 v8, -v10, -v10
    v_cvt_pk_bf16_f32 v9, v12, v12
    v_cvt_pk_bf16_f32 v13, v11, v11
    v_and_b32 v8, 0xffff0000, v8
    v_and_b32 v9, 0xffff0000, v9
    v_and_b32 v13, 0xffff0000, v13
    v_sub_f32_e64 v8, -v10, v8
    v_sub_f32 v9, v12, v9
    v_sub_f32 v13, v11, v13
    v_cvt_pk_bf16_f32 v{B}, -v10, v8
    v_cvt_pk_bf16_f32 v{B+1}, -v10, v8
    v_cvt_pk_bf16_f32 v{B+2}, v12, v9
    v_cvt_pk_bf16_f32 v{B+3}, v11, v13
    s_cmp_ge_u32 s3, s57
    s_cbranch_scc1 {n}_q
    s_lshl_b32 s30, s16, 7
    s_add_u32 s30, s30, {FK}
    s_add_u32 s30, s30, s59
    s_cmp_eq_u32 s54, 0
    s_cbranch_scc1 {n}_k3
    {MFMA} {vr(KA,16)}, {vr(B)}, {vr(WXK)}, {vr(KA,16)}
    {MFMA} {vr(QA,16)}, {vr(B)}, {vr(SEL)}, 0
    s_branch {n}_k7
    {n}_k3:
    {MFMA} {vr(KA,16)}, {vr(WXK)}, {vr(B)}, {vr(KA,16)}
    {n}_k7:
    v_and_b32 v9, 27, v4
    v_cmp_eq_u32 vcc, 16, v9
    v_mov_b32 v9, 0x3f803f80
    s_nop 1
    v_cndmask_b32 v9, 0, v9, vcc
    """)
    for w in range(1, 7):
        k(f"s_waitcnt lgkmcnt({12-2*w})")
        for i in range(8): k(f"v_add_f32 v{96+i}, v{96+i}, v{96+8*w+i}")
    k(f"s_cmp_eq_u32 s54, 0\ns_cbranch_scc1 {n}_k5\ns_cmp_eq_u32 s3, 0\ns_cbranch_scc1 {n}_ka")
    for i in range(8): k(f"v_mov_b32 v{KA+i}, v{KA+8+i}\nv_mov_b32 v{QA+i}, v{QA+8+i}")
    k(f"{n}_ka:")
    for i in range(8): k(f"v_add_f32 v{96+i}, v{96+i}, v{KA+i}")
    for i in range(8): k(f"v_mul_f32 v{96+i}, v{96+i}, v{QA+i}")
    for p in range(4): k(f"v_cvt_pk_bf16_f32 v{104+p}, v{96+2*p}, v{97+2*p}")
    for p in range(4): k(f"v_or_b32 v{104+p}, v{104+p}, v9")
    k(f"""
    s_lshl_b32 s31, s16, 1
    s_add_u32 s31, s31, s3
    s_lshl_b32 s31, s31, 10
    s_add_u32 s31, s31, {VP}
    buffer_store_dwordx4 {vr(104)}, v1, s[4:7], s31 offen {SC}
    s_lshl_b32 s31, s3, 2
    s_add_u32 s30, s30, s31
    s_add_u32 s30, s30, 4
    s_mov_b32 s32, 0
    s_branch {n}_k6
    {n}_k5:
    """)
    for i in range(8): k(f"v_add_f32 v{96+i}, v{96+i}, v{KA+i}")
    for i in range(8): k(f"v_mul_f32 v{96+i}, v{96+i}, v11")
    for p in range(4): k(f"v_cvt_pk_bf16_f32 v{104+p}, v{96+2*p}, v{97+2*p}")
    k(f"""
    s_lshl_b32 s31, s16, 10
    s_add_u32 s31, s31, {KP}
    buffer_store_dwordx4 {vr(104)}, v1, s[4:7], s31 offen {SC}
    v_mul_f32 v12, v96, v96
    """)
    for i in range(1, 8): k(f"v_fma_f32 v12, v{96+i}, v{96+i}, v12")
    k("v_mov_b32 v13, v12\ns_nop 1\nv_permlane32_swap_b32 v12, v13\ns_nop 1\nv_add_f32 v12, v12, v13")
    dpp_max(k, 12, 32, 33)
    k(f"""
    s_min_u32 s32, s32, -2
    {n}_k6:
    v_mov_b32 v13, s32
    v_mov_b32 v9, 0
    s_mov_b64 exec, 1
    s_waitcnt vmcnt(0)
    buffer_store_dword v13, v9, s[4:7], s30 offen {SC}
    s_mov_b64 exec, -1
    s_setprio 1
    """)
    k.stamp(6)
    k(f"""
    {n}_q:
    s_lshl_b32 s30, s39, 14
    s_add_u32 s30, s30, {OL}
    v_add_u32 v6, s30, v1
    v_lshlrev_b32 v5, 7, v3
    s_add_u32 s28, s59, {FK}
    s_mov_b32 s34, 0x1000
    """)
    for i in range(16): k(f"ds_read_b128 {vr(96+4*i)}, v6 offset:{1024*i}")
    k(f"{MFMA} {vr(QA,16)}, {vr(WXQ)}, {vr(B)}, 0")
    for i in range(16):
        if i == 15: k(f"s_cmp_lt_u32 s3, s57\ns_cbranch_scc1 {n}_kc\ns_waitcnt vmcnt(0)\n{n}_kc:")
        k(f"s_waitcnt vmcnt({max(15-i, 1)}) lgkmcnt({15-i})\n{MFMA} {vr(QA,16)}, a[{4*i}:{4*i+3}], {vr(96+4*i)}, {vr(QA,16)}")
    k.stamp(7)
    k(f"""
    s_xor_b32 s30, s3, 4
    s_lshl_b32 s30, s30, 11
    v_add_u32 v6, s30, v1
    s_lshl_b32 s30, s3, 11
    v_add_u32 v7, s30, v1
    v_mul_f32 v12, {hex(f2u(QSCALE))}, v11
    s_lshl_b32 s40, s19, 14
    s_add_u32 s40, s40, {KP}
    s_lshl_b32 s41, s19, 15
    s_add_u32 s41, s41, {VP}
    s_nop 7
    s_cmp_eq_u32 s39, 0
    s_cbranch_scc1 {n}_sw
    """)
    for i in range(8): k(f"v_swap_b32 v{QA+i}, v{QA+8+i}")
    k(f"""
    {n}_sw:
    ds_write_b128 v6, {vr(QA+8)} offset:{QX}
    ds_write_b128 v6, {vr(QA+12)} offset:{QX+1024}
    s_and_b32 s30, s3, 3
    s_lshl_b32 s30, s30, 1
    s_add_u32 s30, s30, s39
    s_lshl_b32 s30, s30, 10
    v_add_u32 v8, s30, v1
    s_waitcnt lgkmcnt(0)
    s_barrier
    ds_read_b128 {vr(QA+8)}, v7 offset:{QX}
    ds_read_b128 {vr(QA+12)}, v7 offset:{QX+1024}
    s_waitcnt lgkmcnt(0)
    """)
    for i in range(8): k(f"v_add_f32 v{QA+i}, v{QA+i}, v{QA+8+i}")
    for i in range(8): k(f"v_mul_f32 v{QA+i}, v{QA+i}, v12")
    for p in range(4): k(f"v_cvt_pk_bf16_f32 v{P+p}, v{QA+2*p}, v{QA+2*p+1}")
    k(f"ds_write_b128 v8, {vr(P)} offset:{QL}\ns_lshl_b32 s31, s18, 2")
    for b in range(4):
        k(f"s_xor_b32 s30, s19, {b}\ns_add_u32 s30, s30, s31\ns_lshl_b32 s30, s30, 10\nv_add_u32 v{12+b}, s30, v1")
    POLL = f"buffer_load_dwordx3 v[100:102], v5, s[4:7], s28 offen {SC}"
    if PE: k(f"s_cmp_lg_u32 s3, 7\ns_cbranch_scc1 {n}_pe\n{POLL}\n{n}_pe:")
    k("s_waitcnt lgkmcnt(0)\ns_barrier")
    for b in range(4): k(f"ds_read_b128 {vr(Q+4*b)}, v{12+b} offset:{QL}")
    if not PE: k(f"s_cmp_lg_u32 s3, 7\ns_cbranch_scc1 {n}_pe\n{POLL}\n{n}_pe:")
    for i in range(64):
        k(f"v_mov_b32 v{O+i}, 0")
    for i in range(4):
        k(f"v_mov_b32 v{P+4+i}, 0\nv_mov_b32 v{Vb(1,1)+i}, 0\nv_mov_b32 v{8+i}, 0")
    k("s_waitcnt lgkmcnt(0)")
    for b in range(4):
        for r in range(4):
            k(f"v_dot2c_f32_bf16 v{8+b}, v{Q+4*b+r}, v{Q+4*b+r}")
    k(f"""
    s_cmp_lg_u32 s3, 7
    s_cbranch_scc1 {n}_np
    s_branch {n}_pc
    {n}_pl:
    {POLL}
    {n}_pc:
    s_sub_u32 s34, s34, 1
    s_waitcnt vmcnt(0)
    s_cbranch_scc1 {n}_pg
    v_max3_u32 v103, v100, v101, v102
    v_cmp_eq_u32 vcc, -1, v103
    s_nop 4
    s_cbranch_vccnz {n}_pl
    {n}_pg:
    """)
    k.stamp(6)
    k(f"""
    ds_write_b32 v2, v100 offset:{KM}
    s_waitcnt lgkmcnt(0)
    {n}_np:
    s_barrier
    ds_read_b32 v6, v2 offset:{KM}
    buffer_load_dwordx4 {vr(Kb(0))}, v1, s[4:7], s40 offen {SCK}
    buffer_load_dwordx4 {vr(Vb(0,0))}, v1, s[4:7], s41 offen {SCK}
    buffer_load_dwordx4 {vr(Vb(0,1))}, v1, s[4:7], s41 offen offset:1024 {SCK}
    s_add_u32 s40, s40, 1024
    s_add_u32 s41, s41, 2048
    s_waitcnt lgkmcnt(0)
    v_max_f32_dpp v6, v6, v6 quad_perm:[1,0,3,2] row_mask:0xf bank_mask:0xf
    s_nop 2
    v_max_f32_dpp v6, v6, v6 quad_perm:[2,3,0,1] row_mask:0xf bank_mask:0xf
    v_permlane32_swap_b32 v8, v9
    v_permlane32_swap_b32 v10, v11
    v_max_f32_dpp v6, v6, v6 row_half_mirror row_mask:0xf bank_mask:0xf
    v_add_f32 v8, v8, v9
    v_add_f32 v10, v10, v11
    v_max_f32_dpp v6, v6, v6 row_mirror row_mask:0xf bank_mask:0xf
    v_max_f32 v8, v8, v10
    s_nop 0
    v_readlane_b32 s30, v6, 0
    v_readlane_b32 s31, v6, 16
    v_readlane_b32 s32, v6, 32
    v_readlane_b32 s33, v6, 48
    s_max_u32 s30, s30, s31
    s_max_u32 s32, s32, s33
    s_max_u32 s30, s30, s32
    v_mul_f32 v8, s30, v8
    s_mov_b32 s31, {hex(f2u(THR*THR))}
    v_cmp_nge_f32 vcc, s31, v8
    s_mov_b32 s34, 8
    s_nop 3
    s_cbranch_vccnz {n}_slow
    """)
    def wload(n):
        return f"buffer_load_dwordx4 a[{4*n}:{4*n+3}], v1, s[4:7], s43 offen offset:{1024*(n&3)}" + ("\ns_add_u32 s53, s53, 8192\ns_and_b32 s53, s53, 0x7fff\ns_add_u32 s43, s52, s53" if n & 3 == 3 else "")
    def main_loop(slow):
        L = k.lab("loop")
        for i in range(4): k(f"v_mov_b32 v{S+28+i}, 0")
        if slow:
            for i in range(16): k(wload(i))
        k(f"s_waitcnt vmcnt(0)\n{MFMA} {vr(S,16)}, {vr(Kb(0))}, {vr(Q)}, 0\ns_nop 15\n.p2align 6\n{L}:")
        for BB in range(2 if slow else 16):
            B = BB & 1
            for t in range(4):
                Sc, Sn = S + 16*(t & 1), S + 16*((t+1) & 1)
                tn, Bn = (t+1) & 3, (B ^ 1 if t == 3 else B)
                tp, Bp = (t-1) & 3, (B ^ 1 if t == 0 else B)
                def e(i):
                    if slow:
                        k(f"v_sub_f32 v{Sc+i}, v{Sc+i}, v{M+t}")
                    k(f"v_exp_f32 v{Sc+i}, v{Sc+i}")
                def c(p): k(f"v_cvt_pk_bf16_f32 v{P+p}, v{Sc+2*p}, v{Sc+2*p+1}")
                def cp(p): k(f"v_cvt_pk_bf16_f32 v{P+p}, v{Sn+2*p}, v{Sn+2*p+1}")
                if not slow and 4*BB + t == PSW:
                    k(f"s_cmp_lt_u32 s3, 4\ns_cbranch_scc1 {L}x\ns_setprio 0\n{L}x:")
                pf = not slow and 4 <= BB < 10
                e(0); e(1); cp(6); e(2); cp(7)
                if not (BB == 15 and t == 3):
                    if t == 3:
                        k(f"s_waitcnt vmcnt({0 if slow else 1 + pf})")
                    k(f"{MFMA} {vr(Sn,16)}, {vr(Kb(Bn))}, {vr(Q+4*tn)}, 0")
                e(3); e(4); c(0)
                k(f"{MFMA} {vr(O+16*tp,16)}, {vr(Vb(Bp,1))}, {vr(P+4)}, {vr(O+16*tp,16)}")
                if t == 0:
                    if BB < 15:
                        k(f"""
                        buffer_load_dwordx4 {vr(Kb(B^1))}, v1, s[4:7], s40 offen offset:{1024*B} {SCK}
                        buffer_load_dwordx4 {vr(Vb(B^1,0))}, v1, s[4:7], s41 offen offset:{2048*B} {SCK}
                        buffer_load_dwordx4 {vr(Vb(B^1,1))}, v1, s[4:7], s41 offen offset:{2048*B+1024} {SCK}
                        """)
                    if not slow: k(wload(BB))
                    if pf: k(f"buffer_load_dwordx4 {vr(164)}, v1, s[8:11], s42 offen\ns_add_u32 s42, s42, 0x40000")
                e(5); e(6); c(1); e(7); e(8); c(2); e(9); e(10); c(3); e(11); e(12)
                k(f"{MFMA} {vr(O+16*t,16)}, {vr(Vb(B,0))}, {vr(P)}, {vr(O+16*t,16)}")
                c(4); e(13); e(14); c(5); e(15)
            if B: k("s_add_u32 s40, s40, 2048\ns_add_u32 s41, s41, 4096")
        if slow:
            k(f"s_sub_u32 s34, s34, 1\ns_cmp_lg_u32 s34, 0\ns_cbranch_scc1 {L}")
        k(f"""
        s_nop 0
        v_cvt_pk_bf16_f32 v{P+6}, v{S+28}, v{S+29}
        v_cvt_pk_bf16_f32 v{P+7}, v{S+30}, v{S+31}
        s_nop 1
        {MFMA} {vr(O+48,16)}, {vr(Vb(1,1))}, {vr(P+4)}, {vr(O+48,16)}
        """)
    k.stamp(1)
    main_loop(False)
    k.stamp(2)
    k(f"""
    {n}_fin:
    s_cmp_lt_u32 s3, 4
    s_cbranch_scc1 {n}_fp
    s_setprio 2
    {n}_fp:
    s_lshl_b32 s18, s18, 2
    s_lshl_b32 s44, s16, 15
    s_lshl_b32 s45, s38, 11
    s_add_u32 s45, s45, s44
    s_add_u32 s46, s45, {X0P}
    s_cmp_lg_u32 s39, 0
    s_cselect_b32 s46, 0x7ff00000, s46
    buffer_load_dwordx4 {vr(168)}, v1, s[4:7], s46 offen
    buffer_load_dwordx4 {vr(172)}, v1, s[4:7], s46 offen offset:1024
    s_add_u32 s44, s44, {OP}
    s_add_u32 s47, s22, s19
    s_lshl_b32 s47, s47, 10
    s_and_b32 s47, s47, 0x7fff
    s_nop 4
    """)
    for b in (1, 2, 3):
        k(f"""
        s_xor_b32 s30, s19, {b}
        s_add_u32 s30, s30, s18
        s_mul_i32 s30, s30, 6912
        v_add_u32 v6, s30, v1
        v_add_u32 v7, s30, v2
        ds_write_b128 v6, {vr(O+16*b)} offset:{(b-1)*2304}
        ds_write_b128 v6, {vr(O+16*b+4)} offset:{(b-1)*2304+1024}
        ds_write_b32 v7, v{O+16*b+8} offset:{(b-1)*2304+2048}
        """)
    k(f"""
    s_add_u32 s30, s19, s18
    s_mul_i32 s30, s30, 6912
    v_add_u32 v6, s30, v1
    v_add_u32 v7, s30, v2
    s_waitcnt lgkmcnt(0)
    s_barrier
    """)
    k.stamp(3)
    for s in range(3):
        k(f"""
        ds_read_b128 {vr(O+16+16*s)}, v6 offset:{s*2304}
        ds_read_b128 {vr(O+20+16*s)}, v6 offset:{s*2304+1024}
        ds_read_b32 v{O+24+16*s}, v7 offset:{s*2304+2048}
        """)
    for s in range(3):
        k(f"s_waitcnt lgkmcnt({6-3*s})")
        for i in (8, 0, 1, 2, 3, 4, 5, 6, 7):
            k(f"v_add_f32 v{O+i}, v{O+i}, v{O+16+16*s+i}")
    k(f"v_rcp_f32 v{O+8}, v{O+8}\ns_add_u32 s24, s24, {OP-QP}\ns_nop 0")
    for i in range(8):
        k(f"v_mul_f32 v{O+i}, v{O+i}, v{O+8}")
    for p in range(4):
        k(f"v_cvt_pk_bf16_f32 v{P+p}, v{O+2*p}, v{O+2*p+1}")
    k(f"""
    s_and_b32 s30, s47, 0x1fff
    s_add_u32 s30, s30, {OL}
    v_add_u32 v8, s30, v1
    s_lshl_b32 s30, s39, 12
    s_add_u32 s30, s30, {OL}
    v_add_u32 v10, s30, v1
    s_mov_b32 s34, 0x1000
    """)
    for p in range(4):
        k(f"v_min_u32 v{P+p}, -2, v{P+p}")
    k(f"""
    buffer_store_dwordx4 {vr(P)}, v1, s[4:7], s24 offen {SC}
    ds_write_b128 v8, {vr(P)}
    s_waitcnt vmcnt(1)
    """)
    k.stamp(4)
    for i in range(16):
        k(f"v_lshlrev_b32 v{O+i}, 16, v{168+i//2}" if i % 2 == 0 else f"v_and_b32 v{O+i}, 0xffff0000, v{168+i//2}")
    k("s_waitcnt lgkmcnt(0)\ns_barrier")
    for i in range(4):
        k(f"ds_read_b128 {vr(S+4*i)}, v10 offset:{1024*i}")
    for r in range(3):
        k(f"s_add_u32 s47, s47, 8192\ns_and_b32 s47, s47, 0x7fff\ns_add_u32 s{48+r}, s47, s44")
    k(f"""
    v_and_b32 v11, 31, v3
    v_lshrrev_b32 v9, 5, v3
    v_lshlrev_b32 v11, 4, v11
    v_lshl_add_u32 v11, v9, 2, v11              ; o*16 + hf*4
    s_and_b32 s30, s3, 3
    s_lshl_b32 s30, s30, 12
    v_add_u32 v9, s30, v1
    s_lshl_b32 s46, s16, 12
    s_bfe_u32 s47, s38, 0x20001
    s_lshl_b32 s47, s47, 10
    s_add_u32 s46, s46, s47
    s_lshr_b32 s47, s38, 3
    s_lshl_b32 s47, s47, 9
    s_add_u32 s46, s46, s47
    s_and_b32 s47, s38, 1
    s_lshl_b32 s47, s47, 3
    s_add_u32 s46, s46, s47
    s_add_u32 s46, s46, {STB}
    s_add_u32 s45, s45, {X1P}
    """)
    for i in range(4):
        k(f"s_waitcnt lgkmcnt({3-i})\n{MFMA} {vr(O,16)}, a[{4*i}:{4*i+3}], {vr(S+4*i)}, {vr(O,16)}")
    k("s_waitcnt vmcnt(0)")
    k(f"{n}_poll:")
    for r in range(3):
        k(f"buffer_load_dwordx4 {vr(Q+4*r)}, v1, s[4:7], s{48+r} offen {SC}")
    k(f"""
    s_sub_u32 s34, s34, 1
    s_cbranch_scc1 {n}_got
    s_waitcnt vmcnt(0)
    v_max3_u32 v6, v{Q}, v{Q+1}, v{Q+2}
    v_max3_u32 v7, v{Q+3}, v{Q+4}, v{Q+5}
    v_max3_u32 v6, v6, v{Q+6}, v{Q+7}
    v_max3_u32 v7, v7, v{Q+8}, v{Q+9}
    v_max3_u32 v6, v6, v{Q+10}, v{Q+11}
    v_max_u32 v6, v6, v7
    v_cmp_eq_u32 vcc, -1, v6
    s_nop 4
    s_cbranch_vccnz {n}_poll
    {n}_got:
    s_waitcnt vmcnt(0)
    """)

    for r in range(3):
        k(f"ds_write_b128 v8, {vr(Q+4*r)} offset:{8192*(r+1)}")
    k("s_waitcnt lgkmcnt(0)\ns_barrier")
    k.stamp(5)
    for i in range(4, 16):
        k(f"ds_read_b128 {vr(S+4*i)}, v10 offset:{8192*(i//4) + 1024*(i&3)}")
    for i in range(4, 16):
        k(f"s_waitcnt lgkmcnt({15-i})\n{MFMA} {vr(O,16)}, a[{4*i}:{4*i+3}], {vr(S+4*i)}, {vr(O,16)}")
    k(f"s_cmp_eq_u32 s39, 0\ns_cbranch_scc1 {n}_red\ns_nop 15")
    for q in range(4):
        k(f"ds_write_b128 v9, {vr(O+4*q)} offset:{1024*q}")
    k(f"""
    s_waitcnt lgkmcnt(0)
    s_barrier
    s_endpgm
    {n}_red:
    s_lshl_b32 s58, s16, 11
    s_lshl_b32 s31, s38, 7
    s_add_u32 s58, s58, s31
    s_add_u32 s58, s58, s59
    s_add_u32 s58, s58, {FX}
    """)
    k("s_barrier")
    for q in range(4):
        k(f"ds_read_b128 {vr(O+16+4*q)}, v9 offset:{1024*q}")
    for q in range(4):
        k(f"s_waitcnt lgkmcnt({3-q})")
        for i in range(4*q, 4*q+4):
            k(f"v_add_f32 v{O+i}, v{O+i}, v{O+16+i}")
    for p in range(8):
        k(f"v_cvt_pk_bf16_f32 v{P+p}, v{O+2*p}, v{O+2*p+1}")
    k(f"buffer_store_dwordx4 {vr(P)}, v1, s[4:7], s45 offen sc1")
    k(f"buffer_store_dwordx4 {vr(P+4)}, v1, s[4:7], s45 offen offset:1024 sc1")
    k(f"s_load_dwordx4 s[24:27], s[0:1], {A_B2}\ns_barrier")
    emit_stats_out(k, O, 12, 13, 11, 46, 'sc1')
    k.stamp(0, 'f')
    k(f"""
    s_cmp_lt_u32 s2, 240
    s_cbranch_scc1 {n}_f1
    v_mov_b32 v2, 0
    s_mov_b64 exec, 1
    s_waitcnt vmcnt(0)
    buffer_store_dword v2, v2, s[4:7], s58 offen sc1
    s_mov_b64 exec, -1
    s_branch {n}_f2
    {n}_f1:
    """)
    gen_ring(n, 'f1', k)
    k(f"{n}_f2:")
    gen_ring(n, 'f2', k)
    k(f"""
    {n}_end:
    s_endpgm
    {n}_slow:
    s_mov_b32 s35, {KP}
    s_mov_b32 s36, 64
    """)
    for t in range(4):
        k(f"v_mov_b32 v{M+t}, 0xff800000")
    L = k.lab("mx")
    k(f"{L}:\nbuffer_load_dwordx4 {vr(Kb(1))}, v1, s[4:7], s35 offen {SC}\ns_waitcnt vmcnt(0)")
    for h in range(2):
        for t in range(2):
            k(f"{MFMA} {vr(S+16*t,16)}, {vr(Kb(1))}, {vr(Q+8*h+4*t)}, 0")
        k("s_nop 15\ns_nop 3")
        for t in range(2):
            for i in range(8):
                k(f"v_max3_f32 v{M+2*h+t}, v{M+2*h+t}, v{S+16*t+2*i}, v{S+16*t+2*i+1}")
    k(f"""
    s_add_u32 s35, s35, 1024
    s_sub_u32 s36, s36, 1
    s_cmp_lg_u32 s36, 0
    s_cbranch_scc1 {L}
    """)
    for t in range(4):
        k(f"v_mov_b32 v{8+t}, v{M+t}")
    k("s_nop 1")
    for t in range(4):
        k(f"v_permlane32_swap_b32 v{8+t}, v{M+t}")
    k("s_nop 1")
    for t in range(4):
        k(f"v_max_f32 v{M+t}, v{M+t}, v{8+t}")
    main_loop(True)
    k(f"s_branch {n}_fin")
    return k
```

```python
NAME = "interleave_layers__grouped_kv_mqa__dense_activation_gelu__prompt"
KB1 = 1024
WO_P  = 0
W1_P  = WO_P + 512*KB1
WX    = W1_P + 1376*KB1
WQ_P  = WX + 64*KB1
WKV_P = WQ_P + 512*KB1
W2_P  = WKV_P + 32*KB1
KMAX  = W2_P + 1376*KB1
X0P   = KMAX + 8*KB1
X1P   = X0P + 2048*KB1
STA   = X1P + 2048*KB1
STB   = STA + 256*KB1
QP    = STB + 256*KB1
KP    = QP + 2048*KB1
VP    = KP + 64*KB1
OP    = VP + 128*KB1
HP    = OP + 2048*KB1
FH, FX, FK, FL = QP, QP + 0x20000, QP + 0x40000, 0x80000
WS_END = HP + 64*86*KB1
A_X, A_WQ, A_WK, A_WV, A_WO, A_BX, A_W1, A_B1, A_W2, A_B2, A_OUT, A_DBG, A_WS = [8*i for i in range(13)]

import struct, os
def f2u(f):
    return struct.unpack("<I", struct.pack("<f", f))[0]

class K:
    def __init__(self, name, grid, block, lds, vgpr, sgpr=96):
        self.name, self.grid, self.block, self.lds, self.vgpr, self.sgpr = name, grid, block, lds, vgpr, sgpr
        self.L = []
        self.nlab = 0
    def __call__(self, s):
        for line in s.split("\n"):
            line = line.strip()
            if line:
                self.L.append(("" if line.endswith(":") else "    ") + line)
    def stamp(self, i, ph='a'):
        if os.environ.get("PROF") == ph:
            self(f"s_memtime s[80:81]\ns_waitcnt lgkmcnt(0)\ns_sub_u32 s{64+i}, s80, s94")
    def lab(self, base="L"):
        self.nlab += 1
        return f"{self.name}_{base}{self.nlab}"
    def srd(self, d, ptr, nbytes):
        self(f"s_mov_b32 s{d}, s{ptr}\ns_mov_b32 s{d+1}, s{ptr+1}\ns_mov_b32 s{d+2}, {nbytes}\ns_mov_b32 s{d+3}, 0x20000")
    def text(self):
        if os.environ.get("PROF"):
            K.idx = getattr(K, "idx", -1) + 1
            self.sgpr = 102
            pre = [f"s_load_dwordx2 s[88:89], s[0:1], {A_WS}", "s_memrealtime s[92:93]", "s_memtime s[94:95]",
                   "v_readfirstlane_b32 s86, v0", "s_lshr_b32 s86, s86, 6", "s_lshl_b32 s87, s2, 3", "s_add_u32 s87, s87, s86",
                   "s_lshl_b32 s87, s87, 6", f"s_add_u32 s87, s87, {(56<<20) + K.idx*262144}", "s_waitcnt lgkmcnt(0)"] + [f"s_mov_b32 s{64+i}, 0" for i in range(8)]
            post = ["s_waitcnt vmcnt(0)", "s_memrealtime s[96:97]", "s_memtime s[98:99]", "s_mov_b64 exec, -1", "s_waitcnt lgkmcnt(0)", "s_sub_u32 s98, s98, s94",
                    "v_mov_b32 v4, s92", "v_mov_b32 v5, s96", "v_mov_b32 v6, s98", "v_mov_b32 v7, 0x1234", "v_mov_b32 v8, s87",
                    "global_store_dwordx4 v8, v[4:7], s[88:89]"] + [f"v_mov_b32 v{12+i}, s{64+i}" for i in range(8)] + ["global_store_dwordx4 v8, v[12:15], s[88:89] offset:16", "global_store_dwordx4 v8, v[16:19], s[88:89] offset:32", "s_endpgm"]
            L = pre
            for l in self.L:
                L += post if l.strip() == "s_endpgm" else [l]
            self.L = L
        return (f".globl {self.name}\n.p2align 8\n.type {self.name},@function\n{self.name}:\n" + "\n".join(self.L) + "\n")
    def desc(self):
        acc = (self.vgpr + 3)//4*4
        self.vgpr = acc + getattr(self, 'agpr', 0)
        return f""".p2align 6
.amdhsa_kernel {self.name}
  .amdhsa_next_free_vgpr {self.vgpr}
  .amdhsa_next_free_sgpr {self.sgpr}
  .amdhsa_accum_offset {acc}
  .amdhsa_group_segment_fixed_size 0
  .amdhsa_kernarg_size 104
  .amdhsa_user_sgpr_count 2
  .amdhsa_user_sgpr_kernarg_segment_ptr 1
  .amdhsa_system_sgpr_workgroup_id_x 1
.end_amdhsa_kernel
"""
def vr(a, n=4):
    return f"v[{a}:{a+n-1}]"
def sr(a, n=4):
    return f"s[{a}:{a+n-1}]"

def assemble(kernels, launches, header=""):
    out = header
    for k in launches:
        out += f"; @launch kernel={k.name} grid=({k.grid},1,1) block=({k.block},1,1) lds={k.lds}\n"
    out += '.amdgcn_target "amdgcn-amd-amdhsa--gfx950"\n.text\n'
    for k in kernels:
        out += k.text()
    out += 'code_end:\n'
    out += '.section .rodata,"a"\n'
    for k in kernels:
        out += k.desc()
    return out

def emit_stats(k, b, mean, rstd, t0, t1):
    for st in (8, 4, 2):
        for r in range(st):
            k(f"v_add_f32 v{b+r}, v{b+r}, v{b+r+st}")
    k(f"""
    s_nop 1
    v_permlane32_swap_b32 v{b}, v{b+1}
    s_nop 1
    v_add_f32 v{t0}, v{b}, v{b+1}
    v_add_f32 v{t1}, v{b}, v{b+1}
    s_nop 1
    v_permlane32_swap_b32 v{t0}, v{t1}
    s_nop 1
    v_mul_f32 v{mean}, {hex(f2u(1/512))}, v{t0}
    v_mul_f32 v{t1}, {hex(f2u(1/512))}, v{t1}
    v_fma_f32 v{t1}, -v{mean}, v{mean}, v{t1}
    v_max_f32 v{t1}, 0, v{t1}
    v_add_f32 v{t1}, {hex(f2u(1e-5))}, v{t1}
    v_rsq_f32 v{rstd}, v{t1}
    s_nop 0
    """)

def emit_stats_out(k, a, t0, t1, voff, soff, sc=''):
    k(f"v_add_f32 v{t0}, v{a}, v{a+1}\nv_mul_f32 v{t1}, v{a}, v{a}\nv_fma_f32 v{t1}, v{a+1}, v{a+1}, v{t1}")
    for i in range(2, 16):
        k(f"v_add_f32 v{t0}, v{t0}, v{a+i}\nv_fma_f32 v{t1}, v{a+i}, v{a+i}, v{t1}")
    k(f"""
    s_nop 1
    v_permlane32_swap_b32 v{t0}, v{t1}
    s_nop 1
    v_add_f32 v{t0}, v{t0}, v{t1}
    buffer_store_dword v{t0}, v{voff}, s[4:7], s{soff} offen {sc}
    """)
MFMA = "v_mfma_f32_32x32x16_bf16"

def dpp_max(k, v, sdst, st, rows=(0, 16)):
    for m in ("quad_perm:[1,0,3,2]", "quad_perm:[2,3,0,1]", "row_half_mirror", "row_mirror"):
        k(f"s_nop 1\nv_max_f32_dpp v{v}, v{v}, v{v} {m} row_mask:0xf bank_mask:0xf")
    k(f"s_nop 1\nv_readlane_b32 s{sdst}, v{v}, {rows[0]}")
    for r in rows[1:]:
        k(f"v_readlane_b32 s{st}, v{v}, {r}\ns_max_u32 s{sdst}, s{sdst}, s{st}")
```

```python
from gen_common import *

def gen_prep():
    k = K("prep_kernel", 0, 512, 4096, 64)
    k(f"""
    s_load_dwordx2 s[20:21], s[0:1], {A_WS}
    s_load_dwordx4 s[24:27], s[0:1], {A_X}      ; x, wq
    s_load_dwordx4 s[28:31], s[0:1], {A_WK}
    s_load_dwordx2 s[32:33], s[0:1], {A_WO}
    s_load_dwordx4 s[36:39], s[0:1], {A_W1}     ; w1, b1
    s_load_dwordx2 s[34:35], s[0:1], {A_W2}
    v_lshrrev_b32 v1, 6, v0
    v_and_b32 v2, 15, v0
    v_readfirstlane_b32 s3, v1
    v_bfe_u32 v3, v0, 4, 1                      ; hf
    v_bfe_u32 v4, v0, 5, 1
    v_lshlrev_b32 v5, 4, v4
    v_lshl_add_u32 v5, v3, 2, v5
    v_lshlrev_b32 v7, 10, v4
    v_lshl_add_u32 v7, v3, 9, v7
    v_lshl_add_u32 v7, v2, 5, v7
    s_mov_b32 s18, 0x05040100
    s_mov_b32 s19, 0x07060302
    s_mov_b32 s23, 0x3f803f80
    s_mov_b32 s22, 0
    s_waitcnt lgkmcnt(0)
    """)
    k.srd(4, 20, WS_END)
    base = 0
    LP, LX, LE, LKV, LT = k.lab("pack"), k.lab("xp"), k.lab("end"), k.lab("kv"), k.lab("tr")
    def wjob(cnt, ptr, Krows, N, dst, wx=None, nbias=0, tgt=None):
        nonlocal base
        nx = k.lab("n")
        st = 2*N
        A, B, C, E, ds, dd = (64, 64*st, 32768, 4096, 32*st, 2048) if Krows == 512 else (32*st, 128, 2048, 2*86*1024, 64, 86*1024)
        k(f"s_cmp_ge_u32 s2, {base+cnt}\ns_cbranch_scc1 {nx}")
        k.srd(8, ptr, Krows*st)
        k.srd(60, 38, nbias)
        k(f"""
        s_sub_u32 s12, s2, {base}
        s_mov_b32 s13, {st}
        s_mul_i32 s14, s12, {A}
        s_mul_i32 s15, s3, {B}
        s_add_u32 s14, s14, s15
        s_mul_i32 s16, s12, {C}
        s_mul_i32 s15, s3, {E}
        s_add_u32 s16, s16, s15
        s_add_u32 s16, s16, {dst}
        s_add_u32 s17, s16, {dd}
        s_mov_b32 s15, {ds}
        """)
        if wx is not None:
            k(f"s_lshl_b32 s22, s12, 10\ns_add_u32 s22, s22, {WX + wx*1024}")
        k(f"s_branch {tgt or LP}\n{nx}:")
        base += cnt
    wjob(43, 36, 512, 1376, W1_P, 17, 2752)
    wjob(16, 26, 512, 512, WQ_P, 0)
    wjob(1, 28, 512, 16, WKV_P, 16, tgt=LKV)
    xbase = base
    k(f"s_cmp_lt_u32 s2, {base+64}\ns_cbranch_scc1 {LX}")
    base += 64
    wjob(16, 32, 512, 512, WO_P)
    wjob(43, 34, 1376, 512, W2_P)
    k.grid = base
    k(f"{LE}:\ns_endpgm")
    def offs():
        for j in range(8):
            k(f"s_mul_i32 s{40+j}, s13, {(j & 3) + 8*(j >> 2)}\ns_add_u32 s{40+j}, s{40+j}, s14\ns_add_u32 s{48+j}, s{40+j}, s15")
    def loads():
        for j in range(16):
            k(f"buffer_load_dword v{16+j}, v6, s[8:11], s{40+j} offen")
    k(f"{LKV}:\nv_and_b32 v6, 7, v2\nv_lshlrev_b32 v6, 2, v6\nv_lshl_add_u32 v6, v5, 5, v6")
    offs()
    k("s_mov_b32 exec_lo, 0x00ff00ff\ns_mov_b32 exec_hi, 0x00ff00ff")
    loads()
    k("s_not_b64 exec, exec\ns_mov_b32 s8, s30\ns_mov_b32 s9, s31")
    loads()
    k(f"s_mov_b64 exec, -1\ns_branch {LT}")
    k(f"{LP}:\nv_mul_lo_u32 v6, v5, s13\nv_lshl_add_u32 v6, v2, 2, v6")
    offs()
    loads()
    k(f"{LT}:\nv_mov_b32 v8, 0\nv_mov_b32 v9, 0")
    for i in range(2):
        k(f"s_waitcnt vmcnt({8 if i == 0 else 2})")
        for c in range(2):
            for p in range(4):
                k(f"v_perm_b32 v{32+8*i+4*c+p}, v{16+8*i+2*p+1}, v{16+8*i+2*p}, s{18+c}")
            k(f"buffer_store_dwordx4 {vr(32+8*i+4*c)}, v7, s[4:7], s{16+i} offen offset:{16*c}")
    k(f"s_cmp_eq_u32 s22, 0\ns_cbranch_scc1 {LE}")
    for i in range(2):
        for p in range(4):
            for c in range(2):
                k(f"v_dot2c_f32_bf16 v{8+c}, s23, v{32+8*i+4*c+p}")
    k(f"""
    v_lshlrev_b32 v10, 3, v0
    v_and_b32 v11, 31, v0
    s_lshl_b32 s14, s12, 6
    v_lshlrev_b32 v12, 1, v11
    ds_write_b64 v10, v[8:9]
    buffer_load_ushort v50, v12, s[60:63], s14 offen
    v_lshlrev_b32 v10, 11, v4
    v_lshl_add_u32 v10, v11, 2, v10
    s_waitcnt lgkmcnt(0)
    s_barrier
    s_cmp_lg_u32 s3, 0
    s_cbranch_scc1 {LE}
    """)
    for r in range(16):
        k(f"ds_read_b32 v{16+r}, v10 offset:{128*r}")
    k("v_lshlrev_b32 v3, 4, v0\nv_cmp_eq_u32 vcc, 0, v4\ns_waitcnt lgkmcnt(0)")
    for st in (8, 4, 2, 1):
        for r in range(st):
            k(f"v_add_f32 v{16+r}, v{16+r}, v{16+r+st}")
    k(f"""
    v_mov_b32 v17, v16
    s_nop 1
    v_permlane32_swap_b32 v16, v17
    s_nop 1
    v_add_f32 v16, v16, v17
    v_cvt_pk_bf16_f32 v48, v16, v16
    v_and_b32 v49, 0xffff0000, v48
    v_sub_f32 v49, v16, v49
    v_cvt_pk_bf16_f32 v49, v49, v49
    v_mov_b32 v51, 0
    s_waitcnt vmcnt(0)
    v_lshl_or_b32 v50, v50, 16, v50
    v_cndmask_b32 v48, 0, v48, vcc
    v_cndmask_b32 v49, 0, v49, vcc
    v_cndmask_b32 v50, 0, v50, vcc
    buffer_store_dwordx4 v[48:51], v3, s[4:7], s22 offen
    s_endpgm
    """)
    k(f"{LX}:")
    k.srd(8, 24, 2048*512*2)
    k(f"""
    s_sub_u32 s13, s2, {xbase}
    s_lshr_b32 s13, s13, 3
    s_and_b32 s14, s2, 7
    s_lshl_b32 s14, s14, 3
    s_add_u32 s13, s13, s14                     ; tb
    s_lshr_b32 s14, s3, 2
    v_and_b32 v1, 7, v0
    s_and_b32 s15, s3, 3
    s_lshl_b32 s15, s15, 3
    v_add_u32 v1, s15, v1
    v_bfe_u32 v2, v0, 3, 3
    v_lshlrev_b32 v3, 10, v1
    v_lshl_add_u32 v3, v2, 5, v3
    s_lshl_b32 s16, s13, 15
    s_lshl_b32 s17, s14, 9
    s_add_u32 s16, s16, s17
    buffer_load_dwordx4 v[16:19], v3, s[8:11], s16 offen
    buffer_load_dwordx4 v[20:23], v3, s[8:11], s16 offen offset:16
    buffer_load_dwordx4 v[24:27], v3, s[8:11], s16 offen offset:256
    buffer_load_dwordx4 v[28:31], v3, s[8:11], s16 offen offset:272
    v_lshlrev_b32 v4, 10, v2
    v_lshl_add_u32 v4, v1, 4, v4
    s_lshl_b32 s17, s13, 15
    s_lshl_b32 s18, s14, 14
    s_add_u32 s17, s17, s18
    s_add_u32 s17, s17, {X0P}
    s_add_u32 s18, s17, 8192
    v_mov_b32 v32, 0
    v_mov_b32 v33, 0
    v_lshrrev_b32 v5, 1, v2
    v_lshlrev_b32 v5, 10, v5
    v_lshl_add_u32 v5, v1, 4, v5
    v_and_b32 v6, 1, v2
    v_lshl_add_u32 v5, v6, 3, v5
    s_lshl_b32 s15, s13, 12
    s_lshl_b32 s16, s14, 9
    s_add_u32 s15, s15, s16
    s_add_u32 s15, s15, {STA}
    v_mov_b32 v36, -1
    v_mov_b32 v37, -1
    v_mov_b32 v38, -1
    v_mov_b32 v39, -1
    v_lshlrev_b32 v7, 4, v0
    v_and_b32 v8, 0x70, v7
    v_bfe_u32 v9, v0, 5, 1
    v_lshl_add_u32 v8, v9, 19, v8
    v_lshlrev_b32 v9, 19, v9
    v_and_b32 v10, 15, v0
    v_lshl_add_u32 v9, v10, 7, v9
    v_bfe_u32 v10, v0, 4, 1
    v_lshl_add_u32 v9, v10, 17, v9
    s_lshl_b32 s45, s13, 11
    s_add_u32 s45, s45, {FH}
    s_lshl_b32 s40, s13, 15
    s_add_u32 s40, s40, {OP}
    s_add_u32 s41, s40, 8192
    s_add_u32 s42, s40, 16384
    s_add_u32 s43, s40, 24576
    s_lshl_b32 s44, s13, 7
    s_add_u32 s44, s44, {FK}
    s_cmp_lg_u32 s3, 0
    s_cselect_b32 s44, 0x7ff00000, s44
    s_cselect_b32 s45, 0x7ff00000, s45
    buffer_store_dwordx4 v[36:39], v7, s[4:7], s40 offen sc1
    buffer_store_dwordx4 v[36:39], v7, s[4:7], s41 offen sc1
    buffer_store_dwordx4 v[36:39], v7, s[4:7], s42 offen sc1
    buffer_store_dwordx4 v[36:39], v7, s[4:7], s43 offen sc1
    buffer_store_dwordx4 v[36:39], v8, s[4:7], s44 offen sc1
    buffer_store_dword v36, v9, s[4:7], s45 offen sc1
    s_waitcnt vmcnt(8)
    v_swap_b32 v18, v20
    v_swap_b32 v19, v21
    buffer_store_dwordx4 v[16:19], v4, s[4:7], s17 offen
    buffer_store_dwordx4 v[20:23], v4, s[4:7], s17 offen offset:512
    s_waitcnt vmcnt(8)
    v_swap_b32 v26, v28
    v_swap_b32 v27, v29
    buffer_store_dwordx4 v[24:27], v4, s[4:7], s18 offen
    buffer_store_dwordx4 v[28:31], v4, s[4:7], s18 offen offset:512
    """)
    for r in range(16, 32):
        k(f"v_dot2c_f32_bf16 v32, s23, v{r}\nv_dot2c_f32_bf16 v33, v{r}, v{r}")
    k("""
    s_nop 3
    buffer_store_dwordx2 v[32:33], v5, s[4:7], s15 offen
    s_endpgm
    """)
    return k
```

```python
from gen_common import *
import math
QSCALE = 0.25*math.log2(math.e)
C1 = -2*math.sqrt(2/math.pi)*math.log2(math.e)
C2 = C1*0.044715
D, R = int(os.environ.get('RD', 3)), 6
SI = int(os.environ.get('SI', 3))
SCH = os.environ.get('SCH', 'sc1')
PW = int(os.environ.get('PW', 1))
PF = int(os.environ.get('PF', 1))

def gen_ffn(name):
    k = K(name, 256, 256, R*16384, 208)
    k.agpr = 96
    k(f"""
    s_cmp_ge_u32 s2, 256
    s_cbranch_scc1 {name}_end
    s_load_dwordx2 s[20:21], s[0:1], {A_WS}
    s_load_dwordx4 s[24:27], s[0:1], {A_B2}
    s_cmp_ge_u32 s2, 240
    s_cbranch_scc1 {name}_f2
    """)
    gen_ring(name, 'f1', k)
    k(f"{name}_f2:")
    gen_ring(name, 'f2', k)
    k(f"{name}_end:\ns_endpgm")
    return k

def gen_ring(name, kind, fk=None):
    final = kind == 'f2'
    f1 = kind == 'f1'
    XP, WP, nkb = {'q': (X0P, WQ_P, 32), 'wo': (OP, WO_P, 32), 'f2': (HP, W2_P, 86), 'f1': (X1P, W1_P, 32)}[kind]
    grid = 240 if f1 else 256
    lds = {'q': R*16384 + 4096, 'wo': R*16384, 'f2': R*16384, 'f1': R*12288}[kind]
    k = fk
    k(f"""
    v_lshrrev_b32 v2, 6, v0
    v_and_b32 v3, 63, v0
    v_readfirstlane_b32 s3, v2                  ; wave
    v_lshlrev_b32 v1, 4, v3                     ; lane*16
    v_lshrrev_b32 v4, 5, v3                     ; hf
    v_and_b32 v5, 31, v3                        ; o
    s_and_b32 s16, s2, 7
    s_lshl_b32 s35, s3, 12
    s_lshl_b32 s36, s3, 10
    """)
    if f1:
        k(f"""
        s_lshl_b32 s16, s16, 1
        s_bfe_u32 s18, s2, 0x10003
        s_add_u32 s16, s16, s18
        s_lshl_b32 s16, s16, 2
        s_add_u32 s16, s16, s3
        s_lshr_b32 s17, s2, 4                   ; n group
        s_lshl_b32 s18, s18, 2
        s_add_u32 s34, s17, s18
        s_and_b32 s34, s34, 7
        s_lshl_b32 s34, s34, 12                 ; rotation
        s_mul_i32 s17, s17, 3                   ; nb0
        s_lshl_b32 s40, s16, 15
        s_add_u32 s40, s40, {XP}
        s_lshl_b32 s41, s17, 15
        s_add_u32 s41, s41, s36
        s_add_u32 s41, s41, {WP}
        v_mov_b32 v6, v1
        v_add_u32 v7, {3*12288}, v1
        """)
    else:
        k(f"""
        s_lshr_b32 s19, s2, 3                   ; local
        s_and_b32 s18, s19, 3
        s_lshl_b32 s16, s16, 2
        s_add_u32 s16, s16, s18
        s_lshr_b32 s17, s19, 2                  ; n pair
        """)
        if nkb == 32:
            k("s_lshl_b32 s18, s18, 1\ns_add_u32 s34, s17, s18\ns_and_b32 s34, s34, 7")
        else:
            k("s_mul_i32 s34, s17, 21\ns_lshr_b32 s34, s34, 3\ns_mul_i32 s18, s18, 5\ns_add_u32 s34, s34, s18\ns_sub_u32 s18, s34, 21\ns_cmp_ge_u32 s34, 21\ns_cselect_b32 s34, s18, s34")
        k(f"""
        s_lshl_b32 s34, s34, 12                 ; rotation
        s_and_b32 s18, s3, 1
        s_lshr_b32 s19, s3, 1
        s_mov_b32 s38, s17
        s_cmp_lt_u32 s3, 2
        s_cselect_b32 s40, s16, s17
        s_mov_b32 s41, {WP}
        s_cselect_b32 s41, {XP}, s41
        s_lshl_b32 s40, s40, 1
        s_add_u32 s40, s40, s18
        s_mul_i32 s40, s40, {nkb*1024}
        s_add_u32 s40, s40, s41
        s_lshl_b32 s16, s16, 1
        s_add_u32 s16, s16, s18
        s_lshl_b32 s17, s17, 1
        s_add_u32 s17, s17, s19
        s_lshl_b32 s18, s18, 12
        s_lshl_b32 s19, s19, 12
        s_add_u32 s19, s19, 8192
        v_add_u32 v6, s18, v1
        v_add_u32 v8, s19, v1
        s_lshl_b32 s44, s16, 15
        s_lshl_b32 s45, s17, 11
        s_add_u32 s44, s44, s45
        """)
    k("s_waitcnt lgkmcnt(0)")
    if kind == 'f2':
        k.srd(8, 24, 1024)
        if final: k.srd(12, 26, 2048*1024)
    if kind == 'q':
        k(f"s_cmp_ge_u32 s38, 4\ns_cbranch_scc1 {name}_v")
        body(k, kind, nkb, final, 'k')
        k(f"{name}_end:\ns_endpgm\n{name}_v:")
        body(k, kind, nkb, final, 'v')
        k("s_endpgm")
    else:
        body(k, kind, nkb, final, False)
    return k

def body(k, kind, nkb, final, kv):
    f1 = kind == 'f1'
    SLOT = 12288 if f1 else 16384
    KVB = R*SLOT
    nfull = nkb//4
    nst = (nkb + 3)//4
    G = lambda s: 4 if s < nfull else nkb - 4*nfull
    nr = 3 if (f1 or kv) else 2
    RB = 64 if (f1 or kv) else 48
    E = 160
    ar = lambda a: f"a[{a}:{a+3}]"
    seq = []
    last = {}
    def wait_for(tag):
        k(f"s_waitcnt vmcnt({len(seq)-1-seq.index(tag)})")
    if not f1:
        k(f"v_add_u32 v7, {3*SLOT}, v6\nv_add_u32 v9, {3*SLOT}, v8")
    if kv:
        k(f"""
        v_and_b32 v15, 3, v3
        v_lshrrev_b32 v2, 2, v3
        v_lshlrev_b32 v2, 9, v2
        v_lshl_add_u32 v2, v15, 4, v2           ; (l>>3)*1024 + hf'*512 + (l&3)*16
        s_lshl_b32 s41, s38, 6
        s_lshl_b32 s42, s3, 13
        s_add_u32 s42, s42, s41
        s_add_u32 m0, s36, {KVB}
        s_add_u32 s42, s42, {WKV_P}
        buffer_load_dwordx4 v2, s[4:7], s42 offen lds
        v_lshlrev_b32 v15, 4, v15
        v_lshl_add_u32 v3, v4, 9, v15           ; hf*512 + (l&3)*16
        v_lshl_add_u32 v15, v4, 6, v15
        v_add_u32 v15, {KVB}, v15
        s_lshr_b32 s39, s34, 3
        s_lshr_b32 s52, s3, 1
        s_lshl_b32 s53, s52, 8
        s_lshl_b32 s52, s52, 11
        v_add_u32 v15, s53, v15
        """)
        for j in range(4):
            k(f"v_subrev_u32 v{200+j}, s52, v{6+j}\nv_add_u32 v{6+j}, s52, v{6+j}")
        seq.append('kvw')
    def issue(s):
        sb = (s % R)*SLOT
        rot = "s34" if s < nfull else str(nfull*4096)
        C = []
        if f1:
            for j in range(3):
                C.append((f"s_add_u32 s43, s41, {rot}\n" if j == 0 else "") + f"s_add_u32 m0, s36, {sb + j*4096}\ns_add_u32 s42, s43, {j*32768}\nbuffer_load_dwordx4 v1, s[4:7], s42 offen lds")
            for i in range(4):
                C.append((f"s_add_u32 s42, s40, {rot}\n" if i == 0 else "") + f"buffer_load_dwordx4 {ar(16*(s%4)+4*i)}, v1, s[4:7], s42 offen offset:{1024*i} sc1")
        else:
            for i in range(G(s)):
                C.append((f"s_add_u32 m0, s35, {sb}\ns_add_u32 s42, s40, {rot}\n" if i == 0 else "") + f"buffer_load_dwordx4 v1, s[4:7], s42 offen offset:{1024*i} {SCH} lds")
        if s < nfull - 1:
            C[-1] += "\ns_add_u32 s34, s34, 4096\n" + ("s_and_b32 s34, s34, 0x7fff" if nkb == 32 else f"s_cmp_eq_u32 s34, {nfull*4096}\ns_cselect_b32 s34, 0, s34")
        for i in range(len(C)): seq.append((s, i))
        last[s] = seq[-1]
        return C
    def issue_epi():
        def ld(n, reg, voff, srd, soff, off):
            k(f"buffer_load_dword{'x%d' % n} {vr(reg, n)}, v{voff}, {srd}, s{soff} offen offset:{off} sc1"); seq.append(('e', len(seq)))
        if kind in ('q', 'f1'):
            k(f"""
            s_lshl_b32 s46, s16, 12
            s_add_u32 s46, s46, {STA if kind == 'q' else STB}
            s_lshl_b32 s47, s17, 10
            s_add_u32 s47, s47, {WX + (17*1024 if f1 else 0)}
            """)
            for q in range(4): ld(4, E+4*q, 1, "s[4:7]", 46, 1024*q)
            for j in range(3 if f1 else 1): ld(4, E+16+4*j, 1, "s[4:7]", 47, 1024*j)
            if kv:
                k(f"s_add_u32 s48, s41, {WX + 16*1024}\ns_cmp_ge_u32 s3, 2\ns_cselect_b32 s48, 0x7ff00000, s48")
                ld(4, E+20, 3, "s[4:7]", 48, 0)
        else:
            k(f"s_add_u32 s45, s44, {X0P if kind == 'wo' else X1P}")
            for q in range(2): ld(4, E+4*q, 1, "s[4:7]", 45, 1024*q)
        if kind == 'f2':
            k(f"v_lshlrev_b32 v3, 3, v4\ns_lshl_b32 s47, s17, 6")
            for q in range(4): ld(2, E+8+2*q, 3, "s[8:11]", 47, 16*q)
        last['e'] = seq[-1]
    def init_acc():
        wait_for(last['e'])
        unp = lambda d, s, i: (f"v_lshlrev_b32 v{d}, 16, v{s+i//2}" if i % 2 == 0 else f"v_and_b32 v{d}, 0xffff0000, v{s+i//2}")
        if kind in ('q', 'f1'):
            emit_stats(k, E, 10, 11, 12, 13)
            B = E + 28
            k(f"""
            v_mul_f32 v12, v13, v11             ; sqrt(var+eps)
            v_cvt_pk_bf16_f32 v2, -v10, -v10
            v_cvt_pk_bf16_f32 v3, v12, v12
            v_cvt_pk_bf16_f32 v13, v11, v11
            v_and_b32 v2, 0xffff0000, v2
            v_and_b32 v3, 0xffff0000, v3
            v_and_b32 v13, 0xffff0000, v13
            v_sub_f32_e64 v2, -v10, v2
            v_sub_f32 v3, v12, v3
            v_sub_f32 v13, v11, v13
            v_cvt_pk_bf16_f32 v{B}, -v10, v2
            v_cvt_pk_bf16_f32 v{B+1}, -v10, v2
            v_cvt_pk_bf16_f32 v{B+2}, v12, v3
            v_cvt_pk_bf16_f32 v{B+3}, v11, v13
            s_nop 1
            """)
            for j in range(3 if f1 else 1):
                k(f"{MFMA} {vr(16+16*j,16)}, {vr(E+16+4*j)}, {vr(B)}, {vr(16+16*j,16)}")
            if kv == 'k': k(f"{MFMA} {vr(32,16)}, {vr(E+20)}, {vr(B)}, {vr(32,16)}")
            if kv == 'v':
                k(f"""
                {MFMA} {vr(32,16)}, {vr(B)}, {vr(E+20)}, {vr(32,16)}
                v_cmp_eq_u32 vcc, 0, v4
                v_mov_b32 v{E+24}, 0
                v_mov_b32 v{E+25}, 0
                v_mov_b32 v{E+26}, 0
                v_mov_b32 v{E+27}, 0x3f803f80
                v_cndmask_b32 v{E+27}, 0, v{E+27}, vcc
                s_nop 1
                {MFMA} {vr(48,16)}, {vr(B)}, {vr(E+24)}, 0
                """)
        else:
            for i in range(16):
                k(unp(E+16+i, E, i))
            if kind == 'f2':
                for i in range(16):
                    k(unp(2+i % 2, E+8, i)); k(f"v_add_f32 v{E+16+i}, v{E+16+i}, v{2+i%2}")
    def reads(s):
        h = 1 if (s % R) >= 3 else 0
        so = ((s % R) % 3)*SLOT
        b = RB + (s & 1)*16*nr
        Rd = []
        for i in range(G(s)):
            if f1:
                for j in range(3):
                    Rd.append((i, f"ds_read_b128 {vr(b+16*j+4*i)}, v{6+h} offset:{so+4096*j+1024*i}"))
            else:
                for j, a in enumerate((6, 8)):
                    if kv and i >= 2: a += 194
                    Rd.append((i, f"ds_read_b128 {vr(b+16*j+4*i)}, v{a+h} offset:{so+1024*i}"))
                if kv and i < 2:
                    Rd.append((i, ("v_add_u32 v14, s39, v15\ns_add_u32 s39, s39, 512\ns_and_b32 s39, s39, 0xfff\n" if i == 0 else "") + f"ds_read_b128 {vr(b+32+4*i)}, v14 offset:{128*i}"))
        return Rd
    def mfmas(s):
        b = RB + (s & 1)*16*nr
        M = []
        for i in range(G(s)):
            c = lambda a: ("0" if s == 0 and i == 0 else vr(a, 16))
            if f1:
                for j in range(3):
                    M.append((i, f"{MFMA} {vr(16+16*j,16)}, {vr(b+16*j+4*i)}, {ar(16*(s%4)+4*i)}, {c(16+16*j)}"))
            else:
                M.append((i, f"{MFMA} {vr(16,16)}, {vr(b+16+4*i)}, {vr(b+4*i)}, {c(16)}"))
                if kv == 'k' and i < 2: M.append((i, f"{MFMA} {vr(32,16)}, {vr(b+32+4*i)}, {vr(b+4*i)}, {c(32)}"))
                if kv == 'v' and i < 2: M.append((i, f"{MFMA} {vr(32,16)}, {vr(b+4*i)}, {vr(b+32+4*i)}, {c(32)}"))
        return M
    npf = [0]
    def prefetch(n):
        C = []
        for i in range(n):
            C.append(f"buffer_load_dwordx4 {vr(E)}, v1, s[12:15], s48 offen\ns_add_u32 s48, s48, {120*1024}")
            seq.append(('pf', npf[0])); npf[0] += 1
        return C
    n = k.name
    def poll(t, mask, pre=""):
        k(f"""
        s_mov_b32 s46, 0x1000
        s_mov_b64 exec, {hex(mask)}
        {pre}
        {n}_fpl{t}:
        buffer_load_dword v10, v2, s[4:7], s45 offen sc1
        s_sub_u32 s46, s46, 1
        s_waitcnt vmcnt(0)
        s_cbranch_scc1 {n}_fpg{t}
        v_cmp_ne_u32 vcc, 0, v10
        s_nop 4
        s_and_b32 s48, vcc_lo, s47
        s_cbranch_scc1 {n}_fpl{t}
        {n}_fpg{t}:
        s_mov_b64 exec, -1
        """)
    if kind == 'f2':
        k(f"""
        s_mov_b64 vcc, 0
        s_cmp_ge_u32 s3, 2
        s_cbranch_scc1 {n}_fnp
        s_lshl_b32 s45, s16, 11
        s_add_u32 s45, s45, {FH}
        s_add_u32 s45, s45, s59
        v_lshlrev_b32 v2, 7, v3
        s_lshr_b32 s47, s34, 12
        s_mul_i32 s47, s47, 43
        s_lshr_b32 s47, s47, 6
        s_lshl_b32 s47, 7, s47
        s_lshr_b32 s48, s47, 14
        s_or_b32 s47, s47, s48
        s_and_b32 s47, s47, 0x3fff
        """)
        poll(0, 0x7fff, "s_waitcnt vmcnt(0)" if PW else "")
        k(f"{n}_fnp:")
        k.stamp(4, 'f')
    if f1:
        CS = [issue(s) for s in range(D)]
        k("s_mov_b32 s37, s34")
        for s in range(D):
            for c in CS[s][:3]: k(c)
            k("s_add_u32 s34, s34, 4096\ns_and_b32 s34, s34, 0x7fff")
            for j in range(3): seq.remove((s, j))
        k(f"""
        s_mov_b32 s34, s37
        v_mov_b32 v2, 0
        s_lshl_b32 s45, s16, 11
        s_add_u32 s45, s45, {FX}
        s_add_u32 s45, s45, s59
        s_mov_b32 s47, -1
        s_mov_b64 exec, 1
        s_waitcnt vmcnt(0)
        buffer_store_dword v2, v2, s[4:7], s58 offen sc1
        s_mov_b64 exec, -1
        s_nop 0
        v_lshlrev_b32 v2, 7, v3
        """)
        poll(2, 0xffff, "s_waitcnt vmcnt(0)")
        k.stamp(1, 'f')
        for s in range(D):
            for c in CS[s][3:]: k(c)
    else:
      for s in range(D):
        for c in issue(s): k(c)
    if kind == 'f2':
        k(f"s_cbranch_vccz {n}_nq\ns_mov_b32 s47, -1")
        poll(1, 0x7fff)
        k(f"{n}_nq:")
    def f2_epi():
        issue_epi()
        for i in range(4): k(f"v_mov_b32 v{112+i}, -1")
        k(f"s_add_u32 s45, s44, {OP}\ns_cmp_lg_u32 s59, 0\ns_cselect_b32 s45, 0x7ff00000, s45")
        for q in range(2):
            k(f"buffer_store_dwordx4 {vr(112)}, v1, s[4:7], s45 offen offset:{1024*q} sc1"); seq.append(('po', q))
    if f1: issue_epi()
    if f1:
        k.srd(12, 20, KMAX)
        k(f"s_lshr_b32 s48, s2, 3\ns_lshl_b32 s48, s48, 12\ns_add_u32 s48, s48, s36\ns_add_u32 s48, s48, {WX}")
    prev = []
    for s in range(nst + 1):
        Rd, C = [], []
        if s < nst:
            wait_for(last[s])
            k("s_barrier")
            Rd = reads(s)
            C = issue(s + D) if s + D < nst else (prefetch(-(-17//D)) if f1 and PF else [])
        else:
            k.stamp(2 if f1 else 6, 'f')
        M = mfmas(s-1) if s else []
        per = -(-len(Rd)//len(M)) if M else len(Rd)
        nrd, done = 0, -1
        for i in range(max(len(M), len(C), 1)):
            if i < len(M):
                if M[i][0] > done:
                    done = M[i][0]
                    k(f"s_waitcnt lgkmcnt({min(15, nrd + sum(1 for r in prev if r[0] > done))})")
                k(M[i][1])
            for r in Rd[nrd:nrd+per]: k(r[1])
            nrd = min(len(Rd), nrd + per)
            for j in range(len(C)):
                if ([0, 1, 2, 2, 5, 8, 11][j] if f1 and M and len(C) == 7 else j) == i: k(C[j])
        assert nrd == len(Rd)
        prev = Rd
        if s == 0 and not f1: f2_epi()
        if s == SI: init_acc()
        if s == 0 and not f1: k.stamp(5, 'f')
    T = RB
    if kind == 'q':
        k(f"v_mul_f32 v12, {hex(f2u(QSCALE))}, v11\ns_add_u32 s45, s44, {QP}\ns_and_b32 s52, s3, 1\ns_lshl_b32 s52, s52, 12\nv_add_u32 v14, s52, v1\ns_nop 13")
        nq = 1 if kv == 'k' else 4
        L = k.lab("x")
        k(f"s_cmp_lt_u32 s3, 2\ns_cbranch_scc1 {L}")
        for q in range(nq): k(f"ds_write_b128 v14, {vr(32+4*q)} offset:{3*SLOT+1024*q}")
        k(f"{L}:")
        for i in range(16): k(f"v_mul_f32 v{16+i}, v{16+i}, v12")
    elif f1:
        k(f"""
        s_barrier
        v_mov_b32 v13, v12
        v_mul_f32 v14, {hex(f2u(C1))}, v11
        v_mul_f32 v2, v11, v11
        v_mul_f32 v8, {hex(f2u(0.044715))}, v14
        v_mov_b32 v15, v14
        v_mul_f32 v8, v8, v2
        s_mul_i32 s49, s16, 86
        s_lshl_b32 s51, s17, 1
        s_add_u32 s49, s49, s51
        v_mov_b32 v9, v8
        s_lshl_b32 s49, s49, 10
        s_add_u32 s49, s49, {HP}
        s_add_u32 s50, s49, 2048
        s_add_u32 s51, s49, 4096
        s_cmp_eq_u32 s17, 42
        s_cselect_b32 s50, 0x7ff00000, s50
        s_cselect_b32 s51, 0x7ff00000, s51
        s_nop 7
        """)
        for g in range(6):
            P = [(16+8*g+2*p, T+16*(g & 1)+2*p) for p in range(4)]
            for a, t in P: k(f"v_pk_mul_f32 {vr(t,2)}, {vr(a,2)}, {vr(a,2)}")
            for a, t in P: k(f"v_pk_fma_f32 {vr(t,2)}, {vr(t,2)}, v[8:9], v[14:15]")
            for a, t in P: k(f"v_pk_mul_f32 {vr(t,2)}, {vr(a,2)}, {vr(t,2)}")
            for a, t in P: k(f"v_exp_f32 v{t}, v{t}\nv_exp_f32 v{t+1}, v{t+1}")
            for a, t in P: k(f"v_pk_fma_f32 {vr(t,2)}, {vr(t,2)}, v[12:13], v[12:13]")
            for a, t in P: k(f"v_rcp_f32 v{t}, v{t}\nv_rcp_f32 v{t+1}, v{t+1}")
            for a, t in P: k(f"v_pk_mul_f32 {vr(t,2)}, {vr(a,2)}, {vr(t,2)}")
            o = T + 32 + 4*g
            for p, (a, t) in enumerate(P): k(f"v_cvt_pk_bf16_f32 v{o+p}, v{t}, v{t+1}")
            k(f"buffer_store_dwordx4 {vr(o)}, v1, s[4:7], s{49+g//2} offen offset:{1024*(g&1)} sc1")
        k(f"""
        s_lshr_b32 s49, s2, 4
        s_lshl_b32 s49, s49, 7
        s_lshl_b32 s50, s16, 11
        s_add_u32 s49, s49, s50
        s_add_u32 s49, s49, {FH}
        s_add_u32 s49, s49, s59
        v_mov_b32 v2, 0
        s_mov_b64 exec, 1
        s_waitcnt vmcnt(0)
        buffer_store_dword v2, v2, s[4:7], s49 offen sc1
        s_mov_b64 exec, -1
        """)
        k.stamp(3, 'f')
        return
    else:
        k(f"s_add_u32 s45, s44, {X1P if kind == 'wo' else X0P}")
        if final:
            k(f"""
            v_lshlrev_b32 v6, 10, v5
            v_lshl_add_u32 v6, v4, 4, v6            ; o*1024 + hf*16
            s_lshl_b32 s48, s16, 15
            s_lshl_b32 s47, s17, 6
            s_add_u32 s48, s48, s47
            """)
        if True:
            k(f"""
            v_lshlrev_b32 v7, 4, v5
            v_lshl_add_u32 v7, v4, 2, v7        ; o*16 + hf*4
            s_lshl_b32 s46, s16, 12
            s_bfe_u32 s47, s17, 0x20001
            s_lshl_b32 s47, s47, 10
            s_add_u32 s46, s46, s47
            s_lshr_b32 s47, s17, 3
            s_lshl_b32 s47, s47, 9
            s_add_u32 s46, s46, s47
            s_and_b32 s47, s17, 1
            s_lshl_b32 s47, s47, 3
            s_add_u32 s46, s46, s47
            s_add_u32 s46, s46, {STB if kind == 'wo' else STA}
            """)
        k("s_cmp_lg_u32 s59, 0\ns_cselect_b32 s45, 0x7ff00000, s45\ns_cselect_b32 s46, 0x7ff00000, s46\ns_cselect_b32 s48, s48, 0x7ff00000\ns_nop 10")
        for i in range(16): k(f"v_add_f32 v{16+i}, v{16+i}, v{E+16+i}")
    for p in range(8):
        k(f"v_cvt_pk_bf16_f32 v{T+p}, v{16+2*p}, v{17+2*p}")
    k(f"buffer_store_dwordx4 {vr(T)}, v1, s[4:7], s45 offen")
    k(f"buffer_store_dwordx4 {vr(T+4)}, v1, s[4:7], s45 offen offset:1024")
    if final:
        for p in range(8): k(f"v_mov_b32 v{T+8+p}, v{T+p}")
        k(f"""
        v_permlane32_swap_b32 v{T+8}, v{T+10}
        v_permlane32_swap_b32 v{T+9}, v{T+11}
        s_nop 0
        v_permlane32_swap_b32 v{T+12}, v{T+14}
        v_permlane32_swap_b32 v{T+13}, v{T+15}
        s_nop 1
        buffer_store_dwordx4 {vr(T+8)}, v6, s[12:15], s48 offen
        buffer_store_dwordx4 {vr(T+12)}, v6, s[12:15], s48 offen offset:32
        """)
    if kind != 'q':
        emit_stats_out(k, 16, 12, 13, 7, 46)
    k.stamp(7, 'f')
    if kv:
        k(f"s_waitcnt lgkmcnt(0)\ns_barrier\ns_cmp_ge_u32 s3, 2\ns_cbranch_scc1 {k.name}_end")
        for q in range(nq): k(f"ds_read_b128 {vr(16+4*q)}, v14 offset:{3*SLOT+1024*q}")
        k("s_waitcnt lgkmcnt(0)")
        for i in range(4*nq): k(f"v_add_f32 v{32+i}, v{32+i}, v{16+i}")
    if kv == 'k':
        for i in range(4): k(f"v_mul_f32 v{32+i}, v{32+i}, v11")
        k(f"""
        v_cvt_pk_bf16_f32 v{T+8}, v32, v33
        v_cvt_pk_bf16_f32 v{T+9}, v34, v35
        v_mul_f32 v12, v32, v32
        v_fma_f32 v12, v33, v33, v12
        v_fma_f32 v12, v34, v34, v12
        v_fma_f32 v12, v35, v35, v12
        v_lshlrev_b32 v6, 4, v5
        s_lshl_b32 s45, s16, 10
        s_and_b32 s46, s38, 1
        s_lshl_b32 s46, s46, 9
        s_add_u32 s45, s45, s46
        s_lshr_b32 s46, s38, 1
        s_lshl_b32 s46, s46, 3
        s_add_u32 s45, s45, s46
        s_add_u32 s45, s45, {KP}
        buffer_store_dwordx2 {vr(T+8,2)}, v6, s[4:7], s45 offen
        """)
        dpp_max(k, 12, 30, 31)
        k(f"""
        v_mov_b32 v13, s30
        v_mov_b32 v6, 0
        s_lshl_b32 s45, s16, 4
        s_lshl_b32 s46, s38, 2
        s_add_u32 s45, s45, s46
        s_add_u32 s45, s45, {KMAX}
        buffer_store_dword v13, v6, s[4:7], s45 offen
        """)
    if kv == 'v':
        for i in range(16): k(f"v_mul_f32 v{32+i}, v{32+i}, v{48+i}")
        for p in range(8): k(f"v_cvt_pk_bf16_f32 v{T+8+p}, v{32+2*p}, v{33+2*p}")
        k(f"""
        s_lshl_b32 s46, s38, 2
        s_sub_u32 s46, s46, 16
        v_and_b32 v6, 3, v5
        v_add_u32 v6, s46, v6
        v_bfe_u32 v7, v5, 2, 1
        v_lshl_add_u32 v6, v7, 4, v6
        v_and_b32 v7, 27, v6
        v_cmp_eq_u32 vcc, 16, v7
        v_mov_b32 v8, 0x3f803f80
        v_lshlrev_b32 v6, 4, v6
        v_lshl_add_u32 v6, v4, 9, v6
        v_cndmask_b32 v8, 0, v8, vcc
        v_cmp_gt_u32 vcc, 4, v5
        s_lshl_b32 s45, s16, 11
        s_add_u32 s45, s45, {VP}
        s_nop 0
        """)
        for p in range(8): k(f"v_cndmask_b32 v{T+8+p}, v8, v{T+8+p}, vcc")
        k(f"""
        v_cmp_gt_u32 vcc, 8, v5
        s_and_saveexec_b64 s[30:31], vcc
        buffer_store_dwordx4 {vr(T+8)}, v6, s[4:7], s45 offen
        buffer_store_dwordx4 {vr(T+12)}, v6, s[4:7], s45 offen offset:1024
        """)
```

```python
import sys
from gen_common import *
from gen_prep import gen_prep
from gen_attn import gen_attn
ref = open(f"cdna_kernels/{NAME}.s.ref").read().split("\n")
header = "\n".join(l for l in ref[:14]) + "\n"
prep = gen_prep()
attn = gen_attn()
l2 = K("layer2_kernel", 256, 512, attn.lds, attn.vgpr); l2.agpr = attn.agpr
l2(f"s_mov_b32 s59, {FL}\ns_branch attn_kernel_main")
ks = [prep, l2, attn]
launches = [prep, attn, l2]
if os.environ.get("NOPS"):
    e = K("nop_kernel", 256, 256, 0, 32); e("s_endpgm"); ks.append(e)
    launches = [x for l in launches for x in (l, e)]
out = sys.argv[1] if len(sys.argv) > 1 else f"cdna_kernels/{NAME}.s"
open(out, "w").write(assemble(ks, launches, header))
```

```python
from gen_common import *

def gen_prep():
    k = K("prep_kernel", 0, 512, 4096, 64)
    k(f"""
    s_load_dwordx2 s[20:21], s[0:1], {A_WS}
    s_load_dwordx4 s[24:27], s[0:1], {A_X}      ; x, wq
    s_load_dwordx4 s[28:31], s[0:1], {A_WK}
    s_load_dwordx2 s[32:33], s[0:1], {A_WO}
    s_load_dwordx4 s[36:39], s[0:1], {A_W1}     ; w1, b1
    s_load_dwordx2 s[34:35], s[0:1], {A_W2}
    v_lshrrev_b32 v1, 6, v0
    v_and_b32 v2, 15, v0
    v_readfirstlane_b32 s3, v1
    v_bfe_u32 v3, v0, 4, 1                      ; hf
    v_bfe_u32 v4, v0, 5, 1
    v_lshlrev_b32 v5, 4, v4
    v_lshl_add_u32 v5, v3, 2, v5
    v_lshlrev_b32 v7, 10, v4
    v_lshl_add_u32 v7, v3, 9, v7
    v_lshl_add_u32 v7, v2, 5, v7
    s_mov_b32 s18, 0x05040100
    s_mov_b32 s19, 0x07060302
    s_mov_b32 s23, 0x3f803f80
    s_mov_b32 s22, 0
    s_waitcnt lgkmcnt(0)
    """)
    k.srd(4, 20, WS_END)
    base = 0
    LP, LX, LE, LKV, LT = k.lab("pack"), k.lab("xp"), k.lab("end"), k.lab("kv"), k.lab("tr")
    def wjob(cnt, ptr, Krows, N, dst, wx=None, nbias=0, tgt=None):
        nonlocal base
        nx = k.lab("n")
        st = 2*N
        A, B, C, E, ds, dd = (64, 64*st, 32768, 4096, 32*st, 2048) if Krows == 512 else (32*st, 128, 2048, 2*86*1024, 64, 86*1024)
        k(f"s_cmp_ge_u32 s2, {base+cnt}\ns_cbranch_scc1 {nx}")
        k.srd(8, ptr, Krows*st)
        k.srd(60, 38, nbias)
        k(f"""
        s_sub_u32 s12, s2, {base}
        s_mov_b32 s13, {st}
        s_mul_i32 s14, s12, {A}
        s_mul_i32 s15, s3, {B}
        s_add_u32 s14, s14, s15
        s_mul_i32 s16, s12, {C}
        s_mul_i32 s15, s3, {E}
        s_add_u32 s16, s16, s15
        s_add_u32 s16, s16, {dst}
        s_add_u32 s17, s16, {dd}
        s_mov_b32 s15, {ds}
        """)
        if wx is not None:
            k(f"s_lshl_b32 s22, s12, 10\ns_add_u32 s22, s22, {WX + wx*1024}")
        k(f"s_branch {tgt or LP}\n{nx}:")
        base += cnt
    wjob(43, 36, 512, 1376, W1_P, 17, 2752)
    wjob(16, 26, 512, 512, WQ_P, 0)
    wjob(1, 28, 512, 16, WKV_P, 16, tgt=LKV)
    xbase = base
    k(f"s_cmp_lt_u32 s2, {base+64}\ns_cbranch_scc1 {LX}")
    base += 64
    wjob(16, 32, 512, 512, WO_P)
    wjob(43, 34, 1376, 512, W2_P)
    k.grid = base
    k(f"{LE}:\ns_endpgm")
    def offs():
        for j in range(8):
            k(f"s_mul_i32 s{40+j}, s13, {(j & 3) + 8*(j >> 2)}\ns_add_u32 s{40+j}, s{40+j}, s14\ns_add_u32 s{48+j}, s{40+j}, s15")
    def loads():
        for j in range(16):
            k(f"buffer_load_dword v{16+j}, v6, s[8:11], s{40+j} offen")
    k(f"{LKV}:\nv_and_b32 v6, 7, v2\nv_lshlrev_b32 v6, 2, v6\nv_lshl_add_u32 v6, v5, 5, v6")
    offs()
    k("s_mov_b32 exec_lo, 0x00ff00ff\ns_mov_b32 exec_hi, 0x00ff00ff")
    loads()
    k("s_not_b64 exec, exec\ns_mov_b32 s8, s30\ns_mov_b32 s9, s31")
    loads()
    k(f"s_mov_b64 exec, -1\ns_branch {LT}")
    k(f"{LP}:\nv_mul_lo_u32 v6, v5, s13\nv_lshl_add_u32 v6, v2, 2, v6")
    offs()
    loads()
    k(f"{LT}:\nv_mov_b32 v8, 0\nv_mov_b32 v9, 0")
    for i in range(2):
        k(f"s_waitcnt vmcnt({8 if i == 0 else 2})")
        for c in range(2):
            for p in range(4):
                k(f"v_perm_b32 v{32+8*i+4*c+p}, v{16+8*i+2*p+1}, v{16+8*i+2*p}, s{18+c}")
            k(f"buffer_store_dwordx4 {vr(32+8*i+4*c)}, v7, s[4:7], s{16+i} offen offset:{16*c}")
    k(f"s_cmp_eq_u32 s22, 0\ns_cbranch_scc1 {LE}")
    for i in range(2):
        for p in range(4):
            for c in range(2):
                k(f"v_dot2c_f32_bf16 v{8+c}, s23, v{32+8*i+4*c+p}")
    k(f"""
    v_lshlrev_b32 v10, 3, v0
    v_and_b32 v11, 31, v0
    s_lshl_b32 s14, s12, 6
    v_lshlrev_b32 v12, 1, v11
    ds_write_b64 v10, v[8:9]
    buffer_load_ushort v50, v12, s[60:63], s14 offen
    v_lshlrev_b32 v10, 11, v4
    v_lshl_add_u32 v10, v11, 2, v10
    s_waitcnt lgkmcnt(0)
    s_barrier
    s_cmp_lg_u32 s3, 0
    s_cbranch_scc1 {LE}
    """)
    for r in range(16):
        k(f"ds_read_b32 v{16+r}, v10 offset:{128*r}")
    k("v_lshlrev_b32 v3, 4, v0\nv_cmp_eq_u32 vcc, 0, v4\ns_waitcnt lgkmcnt(0)")
    for st in (8, 4, 2, 1):
        for r in range(st):
            k(f"v_add_f32 v{16+r}, v{16+r}, v{16+r+st}")
    k(f"""
    v_mov_b32 v17, v16
    s_nop 1
    v_permlane32_swap_b32 v16, v17
    s_nop 1
    v_add_f32 v16, v16, v17
    v_cvt_pk_bf16_f32 v48, v16, v16
    v_and_b32 v49, 0xffff0000, v48
    v_sub_f32 v49, v16, v49
    v_cvt_pk_bf16_f32 v49, v49, v49
    v_mov_b32 v51, 0
    s_waitcnt vmcnt(0)
    v_lshl_or_b32 v50, v50, 16, v50
    v_cndmask_b32 v48, 0, v48, vcc
    v_cndmask_b32 v49, 0, v49, vcc
    v_cndmask_b32 v50, 0, v50, vcc
    buffer_store_dwordx4 v[48:51], v3, s[4:7], s22 offen
    s_endpgm
    """)
    k(f"{LX}:")
    k.srd(8, 24, 2048*512*2)
    k(f"""
    s_sub_u32 s13, s2, {xbase}
    s_lshr_b32 s13, s13, 3
    s_and_b32 s14, s2, 7
    s_lshl_b32 s14, s14, 3
    s_add_u32 s13, s13, s14                     ; tb
    s_lshr_b32 s14, s3, 2
    v_and_b32 v1, 7, v0
    s_and_b32 s15, s3, 3
    s_lshl_b32 s15, s15, 3
    v_add_u32 v1, s15, v1
    v_bfe_u32 v2, v0, 3, 3
    v_lshlrev_b32 v3, 10, v1
    v_lshl_add_u32 v3, v2, 5, v3
    s_lshl_b32 s16, s13, 15
    s_lshl_b32 s17, s14, 9
    s_add_u32 s16, s16, s17
    s_getpc_b64 s[46:47]
    prep_pc:
    s_add_u32 s46, s46, layer2_kernel-prep_pc
    s_addc_u32 s47, s47, 0
    s_and_b32 s48, s13, 7
    s_lshl_b32 s48, s48, 13
    v_lshlrev_b32 v40, 4, v0
    v_add_u32 v40, s48, v40
    v_min_u32 v40, code_end-layer2_kernel-16, v40
    v_mov_b32 v41, s47
    v_add_co_u32 v40, vcc, s46, v40
    v_addc_co_u32 v41, vcc, 0, v41, vcc
    global_load_dwordx4 v[44:47], v[40:41], off
    buffer_load_dwordx4 v[16:19], v3, s[8:11], s16 offen
    buffer_load_dwordx4 v[20:23], v3, s[8:11], s16 offen offset:16
    buffer_load_dwordx4 v[24:27], v3, s[8:11], s16 offen offset:256
    buffer_load_dwordx4 v[28:31], v3, s[8:11], s16 offen offset:272
    v_lshlrev_b32 v4, 10, v2
    v_lshl_add_u32 v4, v1, 4, v4
    s_lshl_b32 s17, s13, 15
    s_lshl_b32 s18, s14, 14
    s_add_u32 s17, s17, s18
    s_add_u32 s17, s17, {X0P}
    s_add_u32 s18, s17, 8192
    v_mov_b32 v32, 0
    v_mov_b32 v33, 0
    v_lshrrev_b32 v5, 1, v2
    v_lshlrev_b32 v5, 10, v5
    v_lshl_add_u32 v5, v1, 4, v5
    v_and_b32 v6, 1, v2
    v_lshl_add_u32 v5, v6, 3, v5
    s_lshl_b32 s15, s13, 12
    s_lshl_b32 s16, s14, 9
    s_add_u32 s15, s15, s16
    s_add_u32 s15, s15, {STA}
    v_mov_b32 v36, -1
    v_mov_b32 v37, -1
    v_mov_b32 v38, -1
    v_mov_b32 v39, -1
    v_lshlrev_b32 v7, 4, v0
    v_and_b32 v8, 0x70, v7
    v_bfe_u32 v9, v0, 5, 1
    v_lshl_add_u32 v8, v9, 19, v8
    v_lshlrev_b32 v9, 19, v9
    v_and_b32 v10, 15, v0
    v_lshl_add_u32 v9, v10, 7, v9
    v_bfe_u32 v10, v0, 4, 1
    v_lshl_add_u32 v9, v10, 17, v9
    s_lshl_b32 s45, s13, 11
    s_add_u32 s45, s45, {FH}
    s_lshl_b32 s40, s13, 15
    s_add_u32 s40, s40, {OP}
    s_add_u32 s41, s40, 8192
    s_add_u32 s42, s40, 16384
    s_add_u32 s43, s40, 24576
    s_lshl_b32 s44, s13, 7
    s_add_u32 s44, s44, {FK}
    s_cmp_lg_u32 s3, 0
    s_cselect_b32 s44, 0x7ff00000, s44
    s_cselect_b32 s45, 0x7ff00000, s45
    buffer_store_dwordx4 v[36:39], v7, s[4:7], s40 offen sc1
    buffer_store_dwordx4 v[36:39], v7, s[4:7], s41 offen sc1
    buffer_store_dwordx4 v[36:39], v7, s[4:7], s42 offen sc1
    buffer_store_dwordx4 v[36:39], v7, s[4:7], s43 offen sc1
    buffer_store_dwordx4 v[36:39], v8, s[4:7], s44 offen sc1
    buffer_store_dword v36, v9, s[4:7], s45 offen sc1
    s_waitcnt vmcnt(8)
    v_swap_b32 v18, v20
    v_swap_b32 v19, v21
    buffer_store_dwordx4 v[16:19], v4, s[4:7], s17 offen
    buffer_store_dwordx4 v[20:23], v4, s[4:7], s17 offen offset:512
    s_waitcnt vmcnt(8)
    v_swap_b32 v26, v28
    v_swap_b32 v27, v29
    buffer_store_dwordx4 v[24:27], v4, s[4:7], s18 offen
    buffer_store_dwordx4 v[28:31], v4, s[4:7], s18 offen offset:512
    """)
    for r in range(16, 32):
        k(f"v_dot2c_f32_bf16 v32, s23, v{r}\nv_dot2c_f32_bf16 v33, v{r}, v{r}")
    k("""
    s_nop 3
    buffer_store_dwordx2 v[32:33], v5, s[4:7], s15 offen
    s_endpgm
    """)
    return k
```

```python
from gen_common import *
import math
from gen_ring import gen_ring
QSCALE = 0.25*math.log2(math.e)
THR = 60.0

SC = os.environ.get('SC', 'sc1')
SCK = os.environ.get('SCK', 'sc1')
PE = int(os.environ.get('PE', 1))
PSW = int(os.environ.get('PSW', 55))
PA = int(os.environ.get('PA', 0))
PF_END, PB0, PB1 = (KMAX, 1, 15) if PA else (WQ_P, 4, 10)
def gen_attn():
    OL = 8*3*2304
    k = K("attn_kernel", 256, 512, 98304, 192)
    k.agpr = 64
    XT = int(os.environ.get("XT", 0))
    n = k.name
    Q, O, S, P, KV, M = 16, 32, 96, 128, 136, 160
    def Kb(b): return KV + 12*b
    def Vb(b, h): return KV + 12*b + 4 + 4*h
    k(f"""
    s_mov_b32 s59, 0
    {n}_main:
    s_cmp_ge_u32 s2, 256
    s_cbranch_scc1 {n}_end
    s_load_dwordx2 s[20:21], s[0:1], {A_WS}
    v_lshrrev_b32 v2, 6, v0
    v_and_b32 v3, 63, v0
    v_readfirstlane_b32 s3, v2                  ; wave
    v_lshlrev_b32 v1, 4, v3                     ; lane*16
    v_lshlrev_b32 v2, 2, v3                     ; lane*4
    s_and_b32 s16, s2, 7
    s_lshl_b32 s16, s16, 3
    s_lshr_b32 s17, s2, 5
    s_add_u32 s16, s16, s17                     ; tb
    s_bfe_u32 s17, s2, 0x20003
    {"s_lshr_b32 s16, s2, 2" if XT else ""}
    {"s_and_b32 s17, s2, 3" if XT else ""}
    s_mov_b32 s54, s17
    s_lshl_b32 s38, s17, 2
    s_and_b32 s39, s3, 3
    s_add_u32 s38, s38, s39
    s_lshr_b32 s39, s3, 2                       ; k half
    s_lshl_b32 s52, s38, 15
    s_lshl_b32 s44, s39, 12
    s_add_u32 s52, s52, s44
    s_add_u32 s52, s52, {WO_P}
    s_lshl_b32 s53, s17, 13
    s_add_u32 s43, s52, s53
    s_and_b32 s18, s3, 1                        ; g
    s_lshr_b32 s19, s3, 1                       ; kq
    s_lshl_b32 s22, s16, 5
    s_lshl_b32 s17, s17, 3
    s_add_u32 s22, s22, s17
    s_lshl_b32 s17, s18, 2
    s_add_u32 s22, s22, s17
    s_waitcnt lgkmcnt(0)
    """)
    if PSW:
        k(f"s_setprio 1\ns_cmp_lt_u32 s3, 4\ns_cbranch_scc1 {n}_p\ns_setprio 2\n{n}_p:")
    k.srd(4, 20, WS_END)
    k.srd(8, 20, PF_END)
    k(f"s_lshr_b32 s42, s2, 3\ns_lshl_b32 s42, s42, 3\ns_add_u32 s42, s42, s3\ns_lshl_b32 s42, s42, 10\ns_add_u32 s42, s42, {W1_P}")
    KVP, QX, QL, KM = 4096, 36864, 4096, 53248
    XO, WK, ST, B, WXQ, WXK, SEL, KA, QA = 96, 112, 64, 80, 84, 88, 92, 32, 48
    OOB = "0x7ff00000"
    def wq_loads():
        for i in range(16):
            k(f"buffer_load_dwordx4 a[{4*i}:{4*i+3}], v1, s[4:7], s55 offen offset:{1024*(i&3)}" + ("\ns_add_u32 s55, s55, 4096" if i & 3 == 3 else ""))
    k(f"""
    s_add_u32 s24, s22, s19
    s_lshl_b32 s24, s24, 10
    s_add_u32 s24, s24, {QP}
    s_lshl_b32 s56, s3, 12                      ; wave*4096
    s_lshl_b32 s26, s16, 15
    s_add_u32 s26, s26, s56
    s_add_u32 s26, s26, {X0P}
    s_and_b32 s27, s3, 3
    s_lshl_b32 s27, s27, 10
    s_lshl_b32 s28, s16, 12
    s_add_u32 s28, s28, s27
    s_mov_b32 m0, s27
    s_add_u32 s28, s28, {STA}
    s_cmp_ge_u32 s3, 4
    s_cbranch_scc1 {n}_ns
    buffer_load_dwordx4 v1, s[4:7], s28 offen lds
    {n}_ns:
    """)
    for i in range(4): k(f"buffer_load_dwordx4 {vr(XO+4*i)}, v1, s[4:7], s26 offen offset:{1024*i}")
    k(f"""
    v_and_b32 v4, 31, v3
    s_lshl_b32 s27, s54, 8
    v_add_u32 v5, s27, v1
    v_mov_b32 v6, {OOB}
    v_cmp_gt_u32 vcc, 16, v4
    s_add_u32 s27, s56, {WKV_P}
    s_cmp_ge_u32 s54, 2
    s_cselect_b32 s27, {OOB}, s27
    v_cndmask_b32 v5, v6, v5, vcc
    s_cmp_lt_u32 s3, 2
    s_mov_b32 s28, {OOB}
    s_cselect_b32 s28, {WX+16*1024}, s28
    s_lshl_b32 s29, s38, 10
    s_add_u32 s29, s29, {WX}
    s_cmp_lg_u32 s39, 0
    s_cselect_b32 s29, {OOB}, s29
    s_lshl_b32 s55, s38, 15
    s_lshl_b32 s30, s39, 14
    s_add_u32 s55, s55, s30
    s_add_u32 s55, s55, {WQ_P}
    """)
    for i in range(4): k(f"buffer_load_dwordx4 {vr(WK+4*i)}, v5, s[4:7], s27 offen offset:{1024*i}")
    k(f"""
    buffer_load_dwordx4 {vr(WXK)}, v5, s[4:7], s28 offen
    buffer_load_dwordx4 {vr(WXQ)}, v1, s[4:7], s29 offen
    s_add_u32 s30, s56, {OL}
    v_add_u32 v6, s30, v1
    v_add_u32 v7, s56, v1
    s_cmp_lt_u32 s54, 2
    s_cselect_b32 s57, s54, -1
    s_cselect_b32 s58, s54, 7
    s_add_u32 s57, s57, 1
    s_barrier
    s_cmp_gt_u32 s3, s58
    s_cbranch_scc1 {n}_nw
    """)
    wq_loads()
    k(f"s_waitcnt vmcnt(16)\ns_branch {n}_nw2\n{n}_nw:\ns_waitcnt vmcnt(0)\n{n}_nw2:")
    for i in range(4): k(f"ds_write_b128 v6, {vr(XO+4*i)} offset:{1024*i}")
    k(f"s_cmp_ge_u32 s54, 2\ns_cbranch_scc1 {n}_k2\ns_cmp_eq_u32 s54, 0\ns_cbranch_scc1 {n}_k1")
    for i in range(4): k(f"{MFMA} {vr(KA,16)}, {vr(XO+4*i)}, {vr(WK+4*i)}, {vr(KA,16) if i else 0}")
    k(f"s_nop 15\ns_nop 1\nds_write_b128 v7, {vr(KA+8)} offset:{KVP+2048}\nds_write_b128 v7, {vr(KA+12)} offset:{KVP+3072}")
    k(f"s_branch {n}_k4\n{n}_k1:")
    for i in range(4): k(f"{MFMA} {vr(KA,16)}, {vr(WK+4*i)}, {vr(XO+4*i)}, {vr(KA,16) if i else 0}")
    k(f"""
    s_nop 15
    s_nop 1
    {n}_k4:
    ds_write_b128 v7, {vr(KA)} offset:{KVP}
    ds_write_b128 v7, {vr(KA+4)} offset:{KVP+1024}
    {n}_k2:
    s_lshl_b32 s30, s3, 11
    v_add_u32 v14, s30, v1
    s_xor_b32 s30, s3, 1
    s_lshl_b32 s30, s30, 12
    v_add_u32 v15, s30, v14
    s_waitcnt lgkmcnt(0)
    s_barrier
    """)
    k.stamp(0)
    for q in range(4): k(f"ds_read_b128 {vr(ST+4*q)}, v1 offset:{1024*q}")
    k(f"s_cmp_ge_u32 s3, s57\ns_cbranch_scc1 {n}_k8\ns_setprio 3")
    for w in range(1, 8):
        for q in range(2): k(f"ds_read_b128 {vr(96+8*(w-1)+4*q)}, v{15 if w == 1 else 14} offset:{KVP+(4096*w if w > 1 else 0)+1024*q}")
    k(f"""
    s_waitcnt lgkmcnt(14)
    s_branch {n}_k9
    {n}_k8:
    s_cmp_le_u32 s3, s58
    s_cbranch_scc1 {n}_kb
    """)
    wq_loads()
    k(f"""
    {n}_kb:
    s_waitcnt lgkmcnt(0)
    {n}_k9:
    v_cmp_gt_u32 vcc, 32, v3
    v_mov_b32 v{SEL}, 0
    v_mov_b32 v{SEL+1}, 0
    v_mov_b32 v{SEL+2}, 0
    v_mov_b32 v{SEL+3}, 0x3f803f80
    v_cndmask_b32 v{SEL+3}, 0, v{SEL+3}, vcc
    """)
    emit_stats(k, ST, 10, 11, 12, 13)
    k(f"""
    v_mul_f32 v12, v13, v11                     ; sqrt(var+eps)
    v_cvt_pk_bf16_f32 v8, -v10, -v10
    v_cvt_pk_bf16_f32 v9, v12, v12
    v_cvt_pk_bf16_f32 v13, v11, v11
    v_and_b32 v8, 0xffff0000, v8
    v_and_b32 v9, 0xffff0000, v9
    v_and_b32 v13, 0xffff0000, v13
    v_sub_f32_e64 v8, -v10, v8
    v_sub_f32 v9, v12, v9
    v_sub_f32 v13, v11, v13
    v_cvt_pk_bf16_f32 v{B}, -v10, v8
    v_cvt_pk_bf16_f32 v{B+1}, -v10, v8
    v_cvt_pk_bf16_f32 v{B+2}, v12, v9
    v_cvt_pk_bf16_f32 v{B+3}, v11, v13
    s_cmp_ge_u32 s3, s57
    s_cbranch_scc1 {n}_q
    s_lshl_b32 s30, s16, 7
    s_add_u32 s30, s30, {FK}
    s_add_u32 s30, s30, s59
    s_cmp_eq_u32 s54, 0
    s_cbranch_scc1 {n}_k3
    {MFMA} {vr(KA,16)}, {vr(B)}, {vr(WXK)}, {vr(KA,16)}
    {MFMA} {vr(QA,16)}, {vr(B)}, {vr(SEL)}, 0
    s_branch {n}_k7
    {n}_k3:
    {MFMA} {vr(KA,16)}, {vr(WXK)}, {vr(B)}, {vr(KA,16)}
    {n}_k7:
    v_and_b32 v9, 27, v4
    v_cmp_eq_u32 vcc, 16, v9
    v_mov_b32 v9, 0x3f803f80
    s_nop 1
    v_cndmask_b32 v9, 0, v9, vcc
    """)
    for w in range(1, 7):
        k(f"s_waitcnt lgkmcnt({12-2*w})")
        for i in range(8): k(f"v_add_f32 v{96+i}, v{96+i}, v{96+8*w+i}")
    k(f"s_cmp_eq_u32 s54, 0\ns_cbranch_scc1 {n}_k5\ns_cmp_eq_u32 s3, 0\ns_cbranch_scc1 {n}_ka")
    for i in range(8): k(f"v_mov_b32 v{KA+i}, v{KA+8+i}\nv_mov_b32 v{QA+i}, v{QA+8+i}")
    k(f"{n}_ka:")
    for i in range(8): k(f"v_add_f32 v{96+i}, v{96+i}, v{KA+i}")
    for i in range(8): k(f"v_mul_f32 v{96+i}, v{96+i}, v{QA+i}")
    for p in range(4): k(f"v_cvt_pk_bf16_f32 v{104+p}, v{96+2*p}, v{97+2*p}")
    for p in range(4): k(f"v_or_b32 v{104+p}, v{104+p}, v9")
    k(f"""
    s_lshl_b32 s31, s16, 1
    s_add_u32 s31, s31, s3
    s_lshl_b32 s31, s31, 10
    s_add_u32 s31, s31, {VP}
    buffer_store_dwordx4 {vr(104)}, v1, s[4:7], s31 offen {SC}
    s_lshl_b32 s31, s3, 2
    s_add_u32 s30, s30, s31
    s_add_u32 s30, s30, 4
    s_mov_b32 s32, 0
    s_branch {n}_k6
    {n}_k5:
    """)
    for i in range(8): k(f"v_add_f32 v{96+i}, v{96+i}, v{KA+i}")
    for i in range(8): k(f"v_mul_f32 v{96+i}, v{96+i}, v11")
    for p in range(4): k(f"v_cvt_pk_bf16_f32 v{104+p}, v{96+2*p}, v{97+2*p}")
    k(f"""
    s_lshl_b32 s31, s16, 10
    s_add_u32 s31, s31, {KP}
    buffer_store_dwordx4 {vr(104)}, v1, s[4:7], s31 offen {SC}
    v_mul_f32 v12, v96, v96
    """)
    for i in range(1, 8): k(f"v_fma_f32 v12, v{96+i}, v{96+i}, v12")
    k("v_mov_b32 v13, v12\ns_nop 1\nv_permlane32_swap_b32 v12, v13\ns_nop 1\nv_add_f32 v12, v12, v13")
    dpp_max(k, 12, 32, 33)
    k(f"""
    s_min_u32 s32, s32, -2
    {n}_k6:
    v_mov_b32 v13, s32
    v_mov_b32 v9, 0
    s_mov_b64 exec, 1
    s_waitcnt vmcnt(0)
    buffer_store_dword v13, v9, s[4:7], s30 offen {SC}
    s_mov_b64 exec, -1
    s_setprio 1
    """)
    k.stamp(6)
    k(f"""
    {n}_q:
    s_lshl_b32 s30, s39, 14
    s_add_u32 s30, s30, {OL}
    v_add_u32 v6, s30, v1
    v_lshlrev_b32 v5, 7, v3
    s_add_u32 s28, s59, {FK}
    s_mov_b32 s34, 0x1000
    """)
    for i in range(16): k(f"ds_read_b128 {vr(96+4*i)}, v6 offset:{1024*i}")
    k(f"{MFMA} {vr(QA,16)}, {vr(WXQ)}, {vr(B)}, 0")
    for i in range(16):
        if i == 15: k(f"s_cmp_lt_u32 s3, s57\ns_cbranch_scc1 {n}_kc\ns_waitcnt vmcnt(0)\n{n}_kc:")
        k(f"s_waitcnt vmcnt({max(15-i, 1)}) lgkmcnt({15-i})\n{MFMA} {vr(QA,16)}, a[{4*i}:{4*i+3}], {vr(96+4*i)}, {vr(QA,16)}")
    k.stamp(7)
    k(f"""
    s_xor_b32 s30, s3, 4
    s_lshl_b32 s30, s30, 11
    v_add_u32 v6, s30, v1
    s_lshl_b32 s30, s3, 11
    v_add_u32 v7, s30, v1
    v_mul_f32 v12, {hex(f2u(QSCALE))}, v11
    s_lshl_b32 s40, s19, 14
    s_add_u32 s40, s40, {KP}
    s_lshl_b32 s41, s19, 15
    s_add_u32 s41, s41, {VP}
    s_nop 7
    s_cmp_eq_u32 s39, 0
    s_cbranch_scc1 {n}_sw
    """)
    for i in range(8): k(f"v_swap_b32 v{QA+i}, v{QA+8+i}")
    k(f"""
    {n}_sw:
    ds_write_b128 v6, {vr(QA+8)} offset:{QX}
    ds_write_b128 v6, {vr(QA+12)} offset:{QX+1024}
    s_and_b32 s30, s3, 3
    s_lshl_b32 s30, s30, 1
    s_add_u32 s30, s30, s39
    s_lshl_b32 s30, s30, 10
    v_add_u32 v8, s30, v1
    s_waitcnt lgkmcnt(0)
    s_barrier
    ds_read_b128 {vr(QA+8)}, v7 offset:{QX}
    ds_read_b128 {vr(QA+12)}, v7 offset:{QX+1024}
    s_waitcnt lgkmcnt(0)
    """)
    for i in range(8): k(f"v_add_f32 v{QA+i}, v{QA+i}, v{QA+8+i}")
    for i in range(8): k(f"v_mul_f32 v{QA+i}, v{QA+i}, v12")
    for p in range(4): k(f"v_cvt_pk_bf16_f32 v{P+p}, v{QA+2*p}, v{QA+2*p+1}")
    k(f"ds_write_b128 v8, {vr(P)} offset:{QL}\ns_lshl_b32 s31, s18, 2")
    for b in range(4):
        k(f"s_xor_b32 s30, s19, {b}\ns_add_u32 s30, s30, s31\ns_lshl_b32 s30, s30, 10\nv_add_u32 v{12+b}, s30, v1")
    POLL = f"buffer_load_dwordx3 v[100:102], v5, s[4:7], s28 offen {SC}"
    if PE: k(f"s_cmp_lg_u32 s3, 7\ns_cbranch_scc1 {n}_pe\n{POLL}\n{n}_pe:")
    k("s_waitcnt lgkmcnt(0)\ns_barrier")
    for b in range(4): k(f"ds_read_b128 {vr(Q+4*b)}, v{12+b} offset:{QL}")
    if not PE: k(f"s_cmp_lg_u32 s3, 7\ns_cbranch_scc1 {n}_pe\n{POLL}\n{n}_pe:")
    for i in range(64):
        k(f"v_mov_b32 v{O+i}, 0")
    for i in range(4):
        k(f"v_mov_b32 v{P+4+i}, 0\nv_mov_b32 v{Vb(1,1)+i}, 0\nv_mov_b32 v{8+i}, 0")
    k("s_waitcnt lgkmcnt(0)")
    for b in range(4):
        for r in range(4):
            k(f"v_dot2c_f32_bf16 v{8+b}, v{Q+4*b+r}, v{Q+4*b+r}")
    k(f"""
    s_cmp_lg_u32 s3, 7
    s_cbranch_scc1 {n}_np
    s_branch {n}_pc
    {n}_pl:
    {POLL}
    {n}_pc:
    s_sub_u32 s34, s34, 1
    s_waitcnt vmcnt(0)
    s_cbranch_scc1 {n}_pg
    v_max3_u32 v103, v100, v101, v102
    v_cmp_eq_u32 vcc, -1, v103
    s_nop 4
    s_cbranch_vccnz {n}_pl
    {n}_pg:
    """)
    k.stamp(6)
    k(f"""
    ds_write_b32 v2, v100 offset:{KM}
    s_waitcnt lgkmcnt(0)
    {n}_np:
    s_barrier
    ds_read_b32 v6, v2 offset:{KM}
    buffer_load_dwordx4 {vr(Kb(0))}, v1, s[4:7], s40 offen {SCK}
    buffer_load_dwordx4 {vr(Vb(0,0))}, v1, s[4:7], s41 offen {SCK}
    buffer_load_dwordx4 {vr(Vb(0,1))}, v1, s[4:7], s41 offen offset:1024 {SCK}
    s_add_u32 s40, s40, 1024
    s_add_u32 s41, s41, 2048
    s_waitcnt lgkmcnt(0)
    v_max_f32_dpp v6, v6, v6 quad_perm:[1,0,3,2] row_mask:0xf bank_mask:0xf
    s_nop 2
    v_max_f32_dpp v6, v6, v6 quad_perm:[2,3,0,1] row_mask:0xf bank_mask:0xf
    v_permlane32_swap_b32 v8, v9
    v_permlane32_swap_b32 v10, v11
    v_max_f32_dpp v6, v6, v6 row_half_mirror row_mask:0xf bank_mask:0xf
    v_add_f32 v8, v8, v9
    v_add_f32 v10, v10, v11
    v_max_f32_dpp v6, v6, v6 row_mirror row_mask:0xf bank_mask:0xf
    v_max_f32 v8, v8, v10
    s_nop 0
    v_readlane_b32 s30, v6, 0
    v_readlane_b32 s31, v6, 16
    v_readlane_b32 s32, v6, 32
    v_readlane_b32 s33, v6, 48
    s_max_u32 s30, s30, s31
    s_max_u32 s32, s32, s33
    s_max_u32 s30, s30, s32
    v_mul_f32 v8, s30, v8
    s_mov_b32 s31, {hex(f2u(THR*THR))}
    v_cmp_nge_f32 vcc, s31, v8
    s_mov_b32 s34, 8
    s_nop 3
    s_cbranch_vccnz {n}_slow
    """)
    def wload(n):
        return f"buffer_load_dwordx4 a[{4*n}:{4*n+3}], v1, s[4:7], s43 offen offset:{1024*(n&3)}" + ("\ns_add_u32 s53, s53, 8192\ns_and_b32 s53, s53, 0x7fff\ns_add_u32 s43, s52, s53" if n & 3 == 3 else "")
    def main_loop(slow):
        L = k.lab("loop")
        for i in range(4): k(f"v_mov_b32 v{S+28+i}, 0")
        if slow:
            for i in range(16): k(wload(i))
        k(f"s_waitcnt vmcnt(0)\n{MFMA} {vr(S,16)}, {vr(Kb(0))}, {vr(Q)}, 0\ns_nop 15\n.p2align 6\n{L}:")
        for BB in range(2 if slow else 16):
            B = BB & 1
            for t in range(4):
                Sc, Sn = S + 16*(t & 1), S + 16*((t+1) & 1)
                tn, Bn = (t+1) & 3, (B ^ 1 if t == 3 else B)
                tp, Bp = (t-1) & 3, (B ^ 1 if t == 0 else B)
                def e(i):
                    if slow:
                        k(f"v_sub_f32 v{Sc+i}, v{Sc+i}, v{M+t}")
                    k(f"v_exp_f32 v{Sc+i}, v{Sc+i}")
                def c(p): k(f"v_cvt_pk_bf16_f32 v{P+p}, v{Sc+2*p}, v{Sc+2*p+1}")
                def cp(p): k(f"v_cvt_pk_bf16_f32 v{P+p}, v{Sn+2*p}, v{Sn+2*p+1}")
                if not slow and 4*BB + t == PSW:
                    k(f"s_cmp_lt_u32 s3, 4\ns_cbranch_scc1 {L}x\ns_setprio 0\n{L}x:")
                pf = not slow and PB0 <= BB < PB1
                e(0); e(1); cp(6); e(2); cp(7)
                if not (BB == 15 and t == 3):
                    if t == 3:
                        k(f"s_waitcnt vmcnt({0 if slow else 1 + pf})")
                    k(f"{MFMA} {vr(Sn,16)}, {vr(Kb(Bn))}, {vr(Q+4*tn)}, 0")
                e(3); e(4); c(0)
                k(f"{MFMA} {vr(O+16*tp,16)}, {vr(Vb(Bp,1))}, {vr(P+4)}, {vr(O+16*tp,16)}")
                if t == 0:
                    if BB < 15:
                        k(f"""
                        buffer_load_dwordx4 {vr(Kb(B^1))}, v1, s[4:7], s40 offen offset:{1024*B} {SCK}
                        buffer_load_dwordx4 {vr(Vb(B^1,0))}, v1, s[4:7], s41 offen offset:{2048*B} {SCK}
                        buffer_load_dwordx4 {vr(Vb(B^1,1))}, v1, s[4:7], s41 offen offset:{2048*B+1024} {SCK}
                        """)
                    if not slow: k(wload(BB))
                    if pf: k(f"buffer_load_dwordx4 {vr(164)}, v1, s[8:11], s42 offen\ns_add_u32 s42, s42, 0x40000")
                e(5); e(6); c(1); e(7); e(8); c(2); e(9); e(10); c(3); e(11); e(12)
                k(f"{MFMA} {vr(O+16*t,16)}, {vr(Vb(B,0))}, {vr(P)}, {vr(O+16*t,16)}")
                c(4); e(13); e(14); c(5); e(15)
            if B: k("s_add_u32 s40, s40, 2048\ns_add_u32 s41, s41, 4096")
        if slow:
            k(f"s_sub_u32 s34, s34, 1\ns_cmp_lg_u32 s34, 0\ns_cbranch_scc1 {L}")
        k(f"""
        s_nop 0
        v_cvt_pk_bf16_f32 v{P+6}, v{S+28}, v{S+29}
        v_cvt_pk_bf16_f32 v{P+7}, v{S+30}, v{S+31}
        s_nop 1
        {MFMA} {vr(O+48,16)}, {vr(Vb(1,1))}, {vr(P+4)}, {vr(O+48,16)}
        """)
    k.stamp(1)
    main_loop(False)
    k.stamp(2)
    k(f"""
    {n}_fin:
    s_cmp_lt_u32 s3, 4
    s_cbranch_scc1 {n}_fp
    s_setprio 2
    {n}_fp:
    s_lshl_b32 s18, s18, 2
    s_lshl_b32 s44, s16, 15
    s_lshl_b32 s45, s38, 11
    s_add_u32 s45, s45, s44
    s_add_u32 s46, s45, {X0P}
    s_cmp_lg_u32 s39, 0
    s_cselect_b32 s46, 0x7ff00000, s46
    buffer_load_dwordx4 {vr(168)}, v1, s[4:7], s46 offen
    buffer_load_dwordx4 {vr(172)}, v1, s[4:7], s46 offen offset:1024
    s_add_u32 s44, s44, {OP}
    s_add_u32 s47, s22, s19
    s_lshl_b32 s47, s47, 10
    s_and_b32 s47, s47, 0x7fff
    s_nop 4
    """)
    for b in (1, 2, 3):
        k(f"""
        s_xor_b32 s30, s19, {b}
        s_add_u32 s30, s30, s18
        s_mul_i32 s30, s30, 6912
        v_add_u32 v6, s30, v1
        v_add_u32 v7, s30, v2
        ds_write_b128 v6, {vr(O+16*b)} offset:{(b-1)*2304}
        ds_write_b128 v6, {vr(O+16*b+4)} offset:{(b-1)*2304+1024}
        ds_write_b32 v7, v{O+16*b+8} offset:{(b-1)*2304+2048}
        """)
    k(f"""
    s_add_u32 s30, s19, s18
    s_mul_i32 s30, s30, 6912
    v_add_u32 v6, s30, v1
    v_add_u32 v7, s30, v2
    s_waitcnt lgkmcnt(0)
    s_barrier
    """)
    k.stamp(3)
    for s in range(3):
        k(f"""
        ds_read_b128 {vr(O+16+16*s)}, v6 offset:{s*2304}
        ds_read_b128 {vr(O+20+16*s)}, v6 offset:{s*2304+1024}
        ds_read_b32 v{O+24+16*s}, v7 offset:{s*2304+2048}
        """)
    for s in range(3):
        k(f"s_waitcnt lgkmcnt({6-3*s})")
        for i in (8, 0, 1, 2, 3, 4, 5, 6, 7):
            k(f"v_add_f32 v{O+i}, v{O+i}, v{O+16+16*s+i}")
    k(f"v_rcp_f32 v{O+8}, v{O+8}\ns_add_u32 s24, s24, {OP-QP}\ns_nop 0")
    for i in range(8):
        k(f"v_mul_f32 v{O+i}, v{O+i}, v{O+8}")
    for p in range(4):
        k(f"v_cvt_pk_bf16_f32 v{P+p}, v{O+2*p}, v{O+2*p+1}")
    k(f"""
    s_and_b32 s30, s47, 0x1fff
    s_add_u32 s30, s30, {OL}
    v_add_u32 v8, s30, v1
    s_lshl_b32 s30, s39, 12
    s_add_u32 s30, s30, {OL}
    v_add_u32 v10, s30, v1
    s_mov_b32 s34, 0x1000
    """)
    for p in range(4):
        k(f"v_min_u32 v{P+p}, -2, v{P+p}")
    k(f"""
    buffer_store_dwordx4 {vr(P)}, v1, s[4:7], s24 offen {SC}
    ds_write_b128 v8, {vr(P)}
    s_waitcnt vmcnt(1)
    """)
    k.stamp(4)
    for i in range(16):
        k(f"v_lshlrev_b32 v{O+i}, 16, v{168+i//2}" if i % 2 == 0 else f"v_and_b32 v{O+i}, 0xffff0000, v{168+i//2}")
    k("s_waitcnt lgkmcnt(0)\ns_barrier")
    for i in range(4):
        k(f"ds_read_b128 {vr(S+4*i)}, v10 offset:{1024*i}")
    for r in range(3):
        k(f"s_add_u32 s47, s47, 8192\ns_and_b32 s47, s47, 0x7fff\ns_add_u32 s{48+r}, s47, s44")
    k(f"""
    v_and_b32 v11, 31, v3
    v_lshrrev_b32 v9, 5, v3
    v_lshlrev_b32 v11, 4, v11
    v_lshl_add_u32 v11, v9, 2, v11              ; o*16 + hf*4
    s_and_b32 s30, s3, 3
    s_lshl_b32 s30, s30, 12
    v_add_u32 v9, s30, v1
    s_lshl_b32 s46, s16, 12
    s_bfe_u32 s47, s38, 0x20001
    s_lshl_b32 s47, s47, 10
    s_add_u32 s46, s46, s47
    s_lshr_b32 s47, s38, 3
    s_lshl_b32 s47, s47, 9
    s_add_u32 s46, s46, s47
    s_and_b32 s47, s38, 1
    s_lshl_b32 s47, s47, 3
    s_add_u32 s46, s46, s47
    s_add_u32 s46, s46, {STB}
    s_add_u32 s45, s45, {X1P}
    """)
    for i in range(4):
        k(f"s_waitcnt lgkmcnt({3-i})\n{MFMA} {vr(O,16)}, a[{4*i}:{4*i+3}], {vr(S+4*i)}, {vr(O,16)}")
    k("s_waitcnt vmcnt(0)")
    k(f"{n}_poll:")
    for r in range(3):
        k(f"buffer_load_dwordx4 {vr(Q+4*r)}, v1, s[4:7], s{48+r} offen {SC}")
    k(f"""
    s_sub_u32 s34, s34, 1
    s_cbranch_scc1 {n}_got
    s_waitcnt vmcnt(0)
    v_max3_u32 v6, v{Q}, v{Q+1}, v{Q+2}
    v_max3_u32 v7, v{Q+3}, v{Q+4}, v{Q+5}
    v_max3_u32 v6, v6, v{Q+6}, v{Q+7}
    v_max3_u32 v7, v7, v{Q+8}, v{Q+9}
    v_max3_u32 v6, v6, v{Q+10}, v{Q+11}
    v_max_u32 v6, v6, v7
    v_cmp_eq_u32 vcc, -1, v6
    s_nop 4
    s_cbranch_vccnz {n}_poll
    {n}_got:
    s_waitcnt vmcnt(0)
    """)

    for r in range(3):
        k(f"ds_write_b128 v8, {vr(Q+4*r)} offset:{8192*(r+1)}")
    k("s_waitcnt lgkmcnt(0)\ns_barrier")
    k.stamp(5)
    for i in range(4, 16):
        k(f"ds_read_b128 {vr(S+4*i)}, v10 offset:{8192*(i//4) + 1024*(i&3)}")
    for i in range(4, 16):
        k(f"s_waitcnt lgkmcnt({15-i})\n{MFMA} {vr(O,16)}, a[{4*i}:{4*i+3}], {vr(S+4*i)}, {vr(O,16)}")
    k(f"s_cmp_eq_u32 s39, 0\ns_cbranch_scc1 {n}_red\ns_nop 15")
    for q in range(4):
        k(f"ds_write_b128 v9, {vr(O+4*q)} offset:{1024*q}")
    k(f"""
    s_waitcnt lgkmcnt(0)
    s_barrier
    """)
    if os.environ.get("PX"):
        k.srd(8, 20, KMAX)
        k(f"s_lshr_b32 s30, s2, 3\ns_lshl_b32 s30, s30, 2\ns_and_b32 s31, s3, 3\ns_add_u32 s30, s30, s31\ns_lshl_b32 s30, s30, 10\ns_add_u32 s30, s30, {WX}")
        for i in range(16): k(f"buffer_load_dwordx4 {vr(164)}, v1, s[8:11], s30 offen\ns_add_u32 s30, s30, 0x20000" + ("\ns_waitcnt vmcnt(2)" if i & 1 else ""))
        k("s_waitcnt vmcnt(0)")
    k(f"""
    s_endpgm
    {n}_red:
    s_lshl_b32 s58, s16, 11
    s_lshl_b32 s31, s38, 7
    s_add_u32 s58, s58, s31
    s_add_u32 s58, s58, s59
    s_add_u32 s58, s58, {FX}
    """)
    k("s_barrier")
    for q in range(4):
        k(f"ds_read_b128 {vr(O+16+4*q)}, v9 offset:{1024*q}")
    for q in range(4):
        k(f"s_waitcnt lgkmcnt({3-q})")
        for i in range(4*q, 4*q+4):
            k(f"v_add_f32 v{O+i}, v{O+i}, v{O+16+i}")
    for p in range(8):
        k(f"v_cvt_pk_bf16_f32 v{P+p}, v{O+2*p}, v{O+2*p+1}")
    k(f"buffer_store_dwordx4 {vr(P)}, v1, s[4:7], s45 offen sc1")
    k(f"buffer_store_dwordx4 {vr(P+4)}, v1, s[4:7], s45 offen offset:1024 sc1")
    k(f"s_load_dwordx4 s[24:27], s[0:1], {A_B2}")
    emit_stats_out(k, O, 12, 13, 11, 46, 'sc1')
    k("s_barrier")
    k.stamp(0, 'f')
    k(f"""
    s_cmp_lt_u32 s2, 240
    s_cbranch_scc1 {n}_f1
    v_mov_b32 v2, 0
    s_mov_b64 exec, 1
    s_waitcnt vmcnt(0)
    buffer_store_dword v2, v2, s[4:7], s58 offen sc1
    s_mov_b64 exec, -1
    s_branch {n}_f2
    {n}_f1:
    """)
    gen_ring(n, 'f1', k)
    k(f"{n}_f2:")
    gen_ring(n, 'f2', k)
    k(f"""
    {n}_end:
    s_endpgm
    {n}_slow:
    s_mov_b32 s35, {KP}
    s_mov_b32 s36, 64
    """)
    for t in range(4):
        k(f"v_mov_b32 v{M+t}, 0xff800000")
    L = k.lab("mx")
    k(f"{L}:\nbuffer_load_dwordx4 {vr(Kb(1))}, v1, s[4:7], s35 offen {SC}\ns_waitcnt vmcnt(0)")
    for h in range(2):
        for t in range(2):
            k(f"{MFMA} {vr(S+16*t,16)}, {vr(Kb(1))}, {vr(Q+8*h+4*t)}, 0")
        k("s_nop 15\ns_nop 3")
        for t in range(2):
            for i in range(8):
                k(f"v_max3_f32 v{M+2*h+t}, v{M+2*h+t}, v{S+16*t+2*i}, v{S+16*t+2*i+1}")
    k(f"""
    s_add_u32 s35, s35, 1024
    s_sub_u32 s36, s36, 1
    s_cmp_lg_u32 s36, 0
    s_cbranch_scc1 {L}
    """)
    for t in range(4):
        k(f"v_mov_b32 v{8+t}, v{M+t}")
    k("s_nop 1")
    for t in range(4):
        k(f"v_permlane32_swap_b32 v{8+t}, v{M+t}")
    k("s_nop 1")
    for t in range(4):
        k(f"v_max_f32 v{M+t}, v{M+t}, v{8+t}")
    main_loop(True)
    k(f"s_branch {n}_fin")
    return k
```

```python
from gen_common import *
import math
QSCALE = 0.25*math.log2(math.e)
C1 = -2*math.sqrt(2/math.pi)*math.log2(math.e)
C2 = C1*0.044715
D, R = int(os.environ.get('RD', 3)), 6
SI = int(os.environ.get('SI', 3))
SCH = os.environ.get('SCH', 'sc1')
PW = int(os.environ.get('PW', 1))
PF = int(os.environ.get('PF', 1))

def gen_ffn(name):
    k = K(name, 256, 256, R*16384, 208)
    k.agpr = 96
    k(f"""
    s_cmp_ge_u32 s2, 256
    s_cbranch_scc1 {name}_end
    s_load_dwordx2 s[20:21], s[0:1], {A_WS}
    s_load_dwordx4 s[24:27], s[0:1], {A_B2}
    s_cmp_ge_u32 s2, 240
    s_cbranch_scc1 {name}_f2
    """)
    gen_ring(name, 'f1', k)
    k(f"{name}_f2:")
    gen_ring(name, 'f2', k)
    k(f"{name}_end:\ns_endpgm")
    return k

def gen_ring(name, kind, fk=None):
    final = kind == 'f2'
    f1 = kind == 'f1'
    XP, WP, nkb = {'q': (X0P, WQ_P, 32), 'wo': (OP, WO_P, 32), 'f2': (HP, W2_P, 86), 'f1': (X1P, W1_P, 32)}[kind]
    grid = 240 if f1 else 256
    lds = {'q': R*16384 + 4096, 'wo': R*16384, 'f2': R*16384, 'f1': R*12288}[kind]
    k = fk
    k(f"""
    v_lshrrev_b32 v2, 6, v0
    v_and_b32 v3, 63, v0
    v_readfirstlane_b32 s3, v2                  ; wave
    v_lshlrev_b32 v1, 4, v3                     ; lane*16
    v_lshrrev_b32 v4, 5, v3                     ; hf
    v_and_b32 v5, 31, v3                        ; o
    s_and_b32 s16, s2, 7
    s_lshl_b32 s35, s3, 12
    s_lshl_b32 s36, s3, 10
    """)
    if f1:
        k(f"""
        s_lshl_b32 s16, s16, 1
        s_bfe_u32 s18, s2, 0x10003
        s_add_u32 s16, s16, s18
        s_lshl_b32 s16, s16, 2
        s_add_u32 s16, s16, s3
        s_lshr_b32 s17, s2, 4                   ; n group
        s_lshl_b32 s18, s18, 2
        s_add_u32 s34, s17, s18
        s_and_b32 s34, s34, 7
        s_lshl_b32 s34, s34, 12                 ; rotation
        s_mul_i32 s17, s17, 3                   ; nb0
        s_lshl_b32 s40, s16, 15
        s_add_u32 s40, s40, {XP}
        s_lshl_b32 s41, s17, 15
        s_add_u32 s41, s41, s36
        s_add_u32 s41, s41, {WP}
        v_mov_b32 v6, v1
        v_add_u32 v7, {3*12288}, v1
        """)
    else:
        k(f"""
        s_lshr_b32 s19, s2, 3                   ; local
        s_and_b32 s18, s19, 3
        s_lshl_b32 s16, s16, 2
        s_add_u32 s16, s16, s18
        s_lshr_b32 s17, s19, 2                  ; n pair
        """)
        if nkb == 32:
            k("s_lshl_b32 s18, s18, 1\ns_add_u32 s34, s17, s18\ns_and_b32 s34, s34, 7")
        else:
            k("s_mul_i32 s34, s17, 21\ns_lshr_b32 s34, s34, 3\ns_mul_i32 s18, s18, 5\ns_add_u32 s34, s34, s18\ns_sub_u32 s18, s34, 21\ns_cmp_ge_u32 s34, 21\ns_cselect_b32 s34, s18, s34")
        k(f"""
        s_lshl_b32 s34, s34, 12                 ; rotation
        s_and_b32 s18, s3, 1
        s_lshr_b32 s19, s3, 1
        s_mov_b32 s38, s17
        s_cmp_lt_u32 s3, 2
        s_cselect_b32 s40, s16, s17
        s_mov_b32 s41, {WP}
        s_cselect_b32 s41, {XP}, s41
        s_lshl_b32 s40, s40, 1
        s_add_u32 s40, s40, s18
        s_mul_i32 s40, s40, {nkb*1024}
        s_add_u32 s40, s40, s41
        s_lshl_b32 s16, s16, 1
        s_add_u32 s16, s16, s18
        s_lshl_b32 s17, s17, 1
        s_add_u32 s17, s17, s19
        s_lshl_b32 s18, s18, 12
        s_lshl_b32 s19, s19, 12
        s_add_u32 s19, s19, 8192
        v_add_u32 v6, s18, v1
        v_add_u32 v8, s19, v1
        s_lshl_b32 s44, s16, 15
        s_lshl_b32 s45, s17, 11
        s_add_u32 s44, s44, s45
        """)
    k("s_waitcnt lgkmcnt(0)")
    if kind == 'f2':
        k.srd(8, 24, 1024)
        if final: k.srd(12, 26, 2048*1024)
    if kind == 'q':
        k(f"s_cmp_ge_u32 s38, 4\ns_cbranch_scc1 {name}_v")
        body(k, kind, nkb, final, 'k')
        k(f"{name}_end:\ns_endpgm\n{name}_v:")
        body(k, kind, nkb, final, 'v')
        k("s_endpgm")
    else:
        body(k, kind, nkb, final, False)
    return k

def body(k, kind, nkb, final, kv):
    f1 = kind == 'f1'
    SLOT = 12288 if f1 else 16384
    KVB = R*SLOT
    nfull = nkb//4
    nst = (nkb + 3)//4
    G = lambda s: 4 if s < nfull else nkb - 4*nfull
    nr = 3 if (f1 or kv) else 2
    RB = 64 if (f1 or kv) else 48
    E = 160
    ar = lambda a: f"a[{a}:{a+3}]"
    seq = []
    last = {}
    def wait_for(tag):
        k(f"s_waitcnt vmcnt({len(seq)-1-seq.index(tag)})")
    if not f1:
        k(f"v_add_u32 v7, {3*SLOT}, v6\nv_add_u32 v9, {3*SLOT}, v8")
    if kv:
        k(f"""
        v_and_b32 v15, 3, v3
        v_lshrrev_b32 v2, 2, v3
        v_lshlrev_b32 v2, 9, v2
        v_lshl_add_u32 v2, v15, 4, v2           ; (l>>3)*1024 + hf'*512 + (l&3)*16
        s_lshl_b32 s41, s38, 6
        s_lshl_b32 s42, s3, 13
        s_add_u32 s42, s42, s41
        s_add_u32 m0, s36, {KVB}
        s_add_u32 s42, s42, {WKV_P}
        buffer_load_dwordx4 v2, s[4:7], s42 offen lds
        v_lshlrev_b32 v15, 4, v15
        v_lshl_add_u32 v3, v4, 9, v15           ; hf*512 + (l&3)*16
        v_lshl_add_u32 v15, v4, 6, v15
        v_add_u32 v15, {KVB}, v15
        s_lshr_b32 s39, s34, 3
        s_lshr_b32 s52, s3, 1
        s_lshl_b32 s53, s52, 8
        s_lshl_b32 s52, s52, 11
        v_add_u32 v15, s53, v15
        """)
        for j in range(4):
            k(f"v_subrev_u32 v{200+j}, s52, v{6+j}\nv_add_u32 v{6+j}, s52, v{6+j}")
        seq.append('kvw')
    def issue(s):
        sb = (s % R)*SLOT
        rot = "s34" if s < nfull else str(nfull*4096)
        C = []
        if f1:
            for j in range(3):
                C.append((f"s_add_u32 s43, s41, {rot}\n" if j == 0 else "") + f"s_add_u32 m0, s36, {sb + j*4096}\ns_add_u32 s42, s43, {j*32768}\nbuffer_load_dwordx4 v1, s[4:7], s42 offen lds")
            for i in range(4):
                C.append((f"s_add_u32 s42, s40, {rot}\n" if i == 0 else "") + f"buffer_load_dwordx4 {ar(16*(s%4)+4*i)}, v1, s[4:7], s42 offen offset:{1024*i} sc1")
        else:
            for i in range(G(s)):
                C.append((f"s_add_u32 m0, s35, {sb}\ns_add_u32 s42, s40, {rot}\n" if i == 0 else "") + f"buffer_load_dwordx4 v1, s[4:7], s42 offen offset:{1024*i} {SCH} lds")
        if s < nfull - 1:
            C[-1] += "\ns_add_u32 s34, s34, 4096\n" + ("s_and_b32 s34, s34, 0x7fff" if nkb == 32 else f"s_cmp_eq_u32 s34, {nfull*4096}\ns_cselect_b32 s34, 0, s34")
        for i in range(len(C)): seq.append((s, i))
        last[s] = seq[-1]
        return C
    def issue_epi():
        def ld(n, reg, voff, srd, soff, off):
            k(f"buffer_load_dword{'x%d' % n} {vr(reg, n)}, v{voff}, {srd}, s{soff} offen offset:{off} sc1"); seq.append(('e', len(seq)))
        if kind in ('q', 'f1'):
            k(f"""
            s_lshl_b32 s46, s16, 12
            s_add_u32 s46, s46, {STA if kind == 'q' else STB}
            s_lshl_b32 s47, s17, 10
            s_add_u32 s47, s47, {WX + (17*1024 if f1 else 0)}
            """)
            for q in range(4): ld(4, E+4*q, 1, "s[4:7]", 46, 1024*q)
            for j in range(3 if f1 else 1): ld(4, E+16+4*j, 1, "s[4:7]", 47, 1024*j)
            if kv:
                k(f"s_add_u32 s48, s41, {WX + 16*1024}\ns_cmp_ge_u32 s3, 2\ns_cselect_b32 s48, 0x7ff00000, s48")
                ld(4, E+20, 3, "s[4:7]", 48, 0)
        else:
            k(f"s_add_u32 s45, s44, {X0P if kind == 'wo' else X1P}")
            for q in range(2): ld(4, E+4*q, 1, "s[4:7]", 45, 1024*q)
        if kind == 'f2':
            k(f"v_lshlrev_b32 v3, 3, v4\ns_lshl_b32 s47, s17, 6")
            for q in range(4): ld(2, E+8+2*q, 3, "s[8:11]", 47, 16*q)
        last['e'] = seq[-1]
    def init_acc():
        wait_for(last['e'])
        unp = lambda d, s, i: (f"v_lshlrev_b32 v{d}, 16, v{s+i//2}" if i % 2 == 0 else f"v_and_b32 v{d}, 0xffff0000, v{s+i//2}")
        if kind in ('q', 'f1'):
            emit_stats(k, E, 10, 11, 12, 13)
            B = E + 28
            k(f"""
            v_mul_f32 v12, v13, v11             ; sqrt(var+eps)
            v_cvt_pk_bf16_f32 v2, -v10, -v10
            v_cvt_pk_bf16_f32 v3, v12, v12
            v_cvt_pk_bf16_f32 v13, v11, v11
            v_and_b32 v2, 0xffff0000, v2
            v_and_b32 v3, 0xffff0000, v3
            v_and_b32 v13, 0xffff0000, v13
            v_sub_f32_e64 v2, -v10, v2
            v_sub_f32 v3, v12, v3
            v_sub_f32 v13, v11, v13
            v_cvt_pk_bf16_f32 v{B}, -v10, v2
            v_cvt_pk_bf16_f32 v{B+1}, -v10, v2
            v_cvt_pk_bf16_f32 v{B+2}, v12, v3
            v_cvt_pk_bf16_f32 v{B+3}, v11, v13
            s_nop 1
            """)
            for j in range(3 if f1 else 1):
                k(f"{MFMA} {vr(16+16*j,16)}, {vr(E+16+4*j)}, {vr(B)}, {vr(16+16*j,16)}")
            if kv == 'k': k(f"{MFMA} {vr(32,16)}, {vr(E+20)}, {vr(B)}, {vr(32,16)}")
            if kv == 'v':
                k(f"""
                {MFMA} {vr(32,16)}, {vr(B)}, {vr(E+20)}, {vr(32,16)}
                v_cmp_eq_u32 vcc, 0, v4
                v_mov_b32 v{E+24}, 0
                v_mov_b32 v{E+25}, 0
                v_mov_b32 v{E+26}, 0
                v_mov_b32 v{E+27}, 0x3f803f80
                v_cndmask_b32 v{E+27}, 0, v{E+27}, vcc
                s_nop 1
                {MFMA} {vr(48,16)}, {vr(B)}, {vr(E+24)}, 0
                """)
        else:
            for i in range(16):
                k(unp(E+16+i, E, i))
            if kind == 'f2':
                for i in range(16):
                    k(unp(2+i % 2, E+8, i)); k(f"v_add_f32 v{E+16+i}, v{E+16+i}, v{2+i%2}")
    def reads(s):
        h = 1 if (s % R) >= 3 else 0
        so = ((s % R) % 3)*SLOT
        b = RB + (s & 1)*16*nr
        Rd = []
        for i in range(G(s)):
            if f1:
                for j in range(3):
                    Rd.append((i, f"ds_read_b128 {vr(b+16*j+4*i)}, v{6+h} offset:{so+4096*j+1024*i}"))
            else:
                for j, a in enumerate((6, 8)):
                    if kv and i >= 2: a += 194
                    Rd.append((i, f"ds_read_b128 {vr(b+16*j+4*i)}, v{a+h} offset:{so+1024*i}"))
                if kv and i < 2:
                    Rd.append((i, ("v_add_u32 v14, s39, v15\ns_add_u32 s39, s39, 512\ns_and_b32 s39, s39, 0xfff\n" if i == 0 else "") + f"ds_read_b128 {vr(b+32+4*i)}, v14 offset:{128*i}"))
        return Rd
    def mfmas(s):
        b = RB + (s & 1)*16*nr
        M = []
        for i in range(G(s)):
            c = lambda a: ("0" if s == 0 and i == 0 else vr(a, 16))
            if f1:
                for j in range(3):
                    M.append((i, f"{MFMA} {vr(16+16*j,16)}, {vr(b+16*j+4*i)}, {ar(16*(s%4)+4*i)}, {c(16+16*j)}"))
            else:
                M.append((i, f"{MFMA} {vr(16,16)}, {vr(b+16+4*i)}, {vr(b+4*i)}, {c(16)}"))
                if kv == 'k' and i < 2: M.append((i, f"{MFMA} {vr(32,16)}, {vr(b+32+4*i)}, {vr(b+4*i)}, {c(32)}"))
                if kv == 'v' and i < 2: M.append((i, f"{MFMA} {vr(32,16)}, {vr(b+4*i)}, {vr(b+32+4*i)}, {c(32)}"))
        return M
    npf = [0]
    def prefetch(n):
        C = []
        for i in range(n):
            C.append(f"buffer_load_dwordx4 {vr(E)}, v1, s[12:15], s48 offen\ns_add_u32 s48, s48, {120*1024}")
            seq.append(('pf', npf[0])); npf[0] += 1
        return C
    n = k.name
    def poll(t, mask, pre=""):
        k(f"""
        s_mov_b32 s46, 0x1000
        s_mov_b64 exec, {hex(mask)}
        {pre}
        {n}_fpl{t}:
        buffer_load_dword v10, v2, s[4:7], s45 offen sc1
        s_sub_u32 s46, s46, 1
        s_waitcnt vmcnt(0)
        s_cbranch_scc1 {n}_fpg{t}
        v_cmp_ne_u32 vcc, 0, v10
        s_nop 4
        s_and_b32 s48, vcc_lo, s47
        s_cbranch_scc1 {n}_fpl{t}
        {n}_fpg{t}:
        s_mov_b64 exec, -1
        """)
    if kind == 'f2':
        k(f"""
        s_mov_b64 vcc, 0
        s_cmp_ge_u32 s3, 2
        s_cbranch_scc1 {n}_fnp
        s_lshl_b32 s45, s16, 11
        s_add_u32 s45, s45, {FH}
        s_add_u32 s45, s45, s59
        v_lshlrev_b32 v2, 7, v3
        s_lshr_b32 s47, s34, 12
        s_mul_i32 s47, s47, 43
        s_lshr_b32 s47, s47, 6
        s_lshl_b32 s47, 7, s47
        s_lshr_b32 s48, s47, 14
        s_or_b32 s47, s47, s48
        s_and_b32 s47, s47, 0x3fff
        """)
        poll(0, 0x7fff, "s_waitcnt vmcnt(0)" if PW else "")
        k(f"{n}_fnp:")
        k.stamp(4, 'f')
    if f1:
        CS = [issue(s) for s in range(D)]
        k("s_mov_b32 s37, s34")
        for s in range(D):
            for c in CS[s][:3]: k(c)
            k("s_add_u32 s34, s34, 4096\ns_and_b32 s34, s34, 0x7fff")
            for j in range(3): seq.remove((s, j))
        k(f"""
        s_mov_b32 s34, s37
        v_mov_b32 v2, 0
        s_lshl_b32 s45, s16, 11
        s_add_u32 s45, s45, {FX}
        s_add_u32 s45, s45, s59
        s_mov_b32 s47, -1
        s_mov_b64 exec, 1
        s_waitcnt vmcnt(0)
        buffer_store_dword v2, v2, s[4:7], s58 offen sc1
        s_mov_b64 exec, -1
        s_nop 0
        v_lshlrev_b32 v2, 7, v3
        """)
        poll(2, 0xffff, "s_waitcnt vmcnt(0)")
        k.stamp(1, 'f')
        for s in range(D):
            for c in CS[s][3:]: k(c)
    else:
      for s in range(D):
        for c in issue(s): k(c)
    if kind == 'f2':
        k(f"s_cbranch_vccz {n}_nq\ns_mov_b32 s47, -1")
        poll(1, 0x7fff)
        k(f"{n}_nq:")
    def f2_epi():
        issue_epi()
        for i in range(4): k(f"v_mov_b32 v{112+i}, -1")
        k(f"s_add_u32 s45, s44, {OP}\ns_cmp_lg_u32 s59, 0\ns_cselect_b32 s45, 0x7ff00000, s45")
        for q in range(2):
            k(f"buffer_store_dwordx4 {vr(112)}, v1, s[4:7], s45 offen offset:{1024*q} sc1"); seq.append(('po', q))
    if f1: issue_epi()
    if f1:
        k.srd(12, 20, KMAX)
        k(f"s_lshr_b32 s48, s2, 3\ns_lshl_b32 s48, s48, 12\ns_add_u32 s48, s48, s36\ns_add_u32 s48, s48, {WX}")
    prev = []
    for s in range(nst + 1):
        Rd, C = [], []
        if s < nst:
            wait_for(last[s])
            k("s_barrier")
            Rd = reads(s)
            C = issue(s + D) if s + D < nst else (prefetch(-(-17//D)) if f1 and PF else [])
        else:
            k.stamp(2 if f1 else 6, 'f')
        M = mfmas(s-1) if s else []
        per = -(-len(Rd)//len(M)) if M else len(Rd)
        nrd, done = 0, -1
        for i in range(max(len(M), len(C), 1)):
            if i < len(M):
                if M[i][0] > done:
                    done = M[i][0]
                    k(f"s_waitcnt lgkmcnt({min(15, nrd + sum(1 for r in prev if r[0] > done))})")
                k(M[i][1])
            for r in Rd[nrd:nrd+per]: k(r[1])
            nrd = min(len(Rd), nrd + per)
            for j in range(len(C)):
                if ([0, 1, 2, 2, 5, 8, 11][j] if f1 and M and len(C) == 7 else j) == i: k(C[j])
        assert nrd == len(Rd)
        prev = Rd
        if s == 0 and not f1: f2_epi()
        if s == SI: init_acc()
        if s == 0 and not f1: k.stamp(5, 'f')
    T = RB
    if kind == 'q':
        k(f"v_mul_f32 v12, {hex(f2u(QSCALE))}, v11\ns_add_u32 s45, s44, {QP}\ns_and_b32 s52, s3, 1\ns_lshl_b32 s52, s52, 12\nv_add_u32 v14, s52, v1\ns_nop 13")
        nq = 1 if kv == 'k' else 4
        L = k.lab("x")
        k(f"s_cmp_lt_u32 s3, 2\ns_cbranch_scc1 {L}")
        for q in range(nq): k(f"ds_write_b128 v14, {vr(32+4*q)} offset:{3*SLOT+1024*q}")
        k(f"{L}:")
        for i in range(16): k(f"v_mul_f32 v{16+i}, v{16+i}, v12")
    elif f1:
        k(f"""
        s_barrier
        v_mov_b32 v13, v12
        v_mul_f32 v14, {hex(f2u(C1))}, v11
        v_mul_f32 v2, v11, v11
        v_mul_f32 v8, {hex(f2u(0.044715))}, v14
        v_mov_b32 v15, v14
        v_mul_f32 v8, v8, v2
        s_mul_i32 s49, s16, 86
        s_lshl_b32 s51, s17, 1
        s_add_u32 s49, s49, s51
        v_mov_b32 v9, v8
        s_lshl_b32 s49, s49, 10
        s_add_u32 s49, s49, {HP}
        s_add_u32 s50, s49, 2048
        s_add_u32 s51, s49, 4096
        s_cmp_eq_u32 s17, 42
        s_cselect_b32 s50, 0x7ff00000, s50
        s_cselect_b32 s51, 0x7ff00000, s51
        s_nop 7
        """)
        for g in range(6):
            P = [(16+8*g+2*p, T+16*(g & 1)+2*p) for p in range(4)]
            for a, t in P: k(f"v_pk_mul_f32 {vr(t,2)}, {vr(a,2)}, {vr(a,2)}")
            for a, t in P: k(f"v_pk_fma_f32 {vr(t,2)}, {vr(t,2)}, v[8:9], v[14:15]")
            for a, t in P: k(f"v_pk_mul_f32 {vr(t,2)}, {vr(a,2)}, {vr(t,2)}")
            for a, t in P: k(f"v_exp_f32 v{t}, v{t}\nv_exp_f32 v{t+1}, v{t+1}")
            for a, t in P: k(f"v_pk_fma_f32 {vr(t,2)}, {vr(t,2)}, v[12:13], v[12:13]")
            for a, t in P: k(f"v_rcp_f32 v{t}, v{t}\nv_rcp_f32 v{t+1}, v{t+1}")
            for a, t in P: k(f"v_pk_mul_f32 {vr(t,2)}, {vr(a,2)}, {vr(t,2)}")
            o = T + 32 + 4*g
            for p, (a, t) in enumerate(P): k(f"v_cvt_pk_bf16_f32 v{o+p}, v{t}, v{t+1}")
            k(f"buffer_store_dwordx4 {vr(o)}, v1, s[4:7], s{49+g//2} offen offset:{1024*(g&1)} sc1")
        k(f"""
        s_lshr_b32 s49, s2, 4
        s_lshl_b32 s49, s49, 7
        s_lshl_b32 s50, s16, 11
        s_add_u32 s49, s49, s50
        s_add_u32 s49, s49, {FH}
        s_add_u32 s49, s49, s59
        v_mov_b32 v2, 0
        s_mov_b64 exec, 1
        s_waitcnt vmcnt(0)
        buffer_store_dword v2, v2, s[4:7], s49 offen sc1
        s_mov_b64 exec, -1
        """)
        k.stamp(3, 'f')
        return
    else:
        k(f"s_add_u32 s45, s44, {X1P if kind == 'wo' else X0P}")
        if final:
            k(f"""
            v_lshlrev_b32 v6, 10, v5
            v_lshl_add_u32 v6, v4, 4, v6            ; o*1024 + hf*16
            s_lshl_b32 s48, s16, 15
            s_lshl_b32 s47, s17, 6
            s_add_u32 s48, s48, s47
            """)
        if True:
            k(f"""
            v_lshlrev_b32 v7, 4, v5
            v_lshl_add_u32 v7, v4, 2, v7        ; o*16 + hf*4
            s_lshl_b32 s46, s16, 12
            s_bfe_u32 s47, s17, 0x20001
            s_lshl_b32 s47, s47, 10
            s_add_u32 s46, s46, s47
            s_lshr_b32 s47, s17, 3
            s_lshl_b32 s47, s47, 9
            s_add_u32 s46, s46, s47
            s_and_b32 s47, s17, 1
            s_lshl_b32 s47, s47, 3
            s_add_u32 s46, s46, s47
            s_add_u32 s46, s46, {STB if kind == 'wo' else STA}
            """)
        k("s_cmp_lg_u32 s59, 0\ns_cselect_b32 s45, 0x7ff00000, s45\ns_cselect_b32 s46, 0x7ff00000, s46\ns_cselect_b32 s48, s48, 0x7ff00000\ns_nop 10")
        for i in range(16): k(f"v_add_f32 v{16+i}, v{16+i}, v{E+16+i}")
    for p in range(8):
        k(f"v_cvt_pk_bf16_f32 v{T+p}, v{16+2*p}, v{17+2*p}")
    k(f"s_cmp_lg_u32 s59, 0\ns_cbranch_scc1 {k.name}_last")
    k(f"buffer_store_dwordx4 {vr(T)}, v1, s[4:7], s45 offen")
    k(f"buffer_store_dwordx4 {vr(T+4)}, v1, s[4:7], s45 offen offset:1024")
    emit_stats_out(k, 16, 12, 13, 7, 46)
    k(f"s_endpgm\n{k.name}_last:\ns_nop 1")
    if final:
        T -= 8
        k(f"""
        v_permlane32_swap_b32 v{T+8}, v{T+10}
        v_permlane32_swap_b32 v{T+9}, v{T+11}
        s_nop 0
        v_permlane32_swap_b32 v{T+12}, v{T+14}
        v_permlane32_swap_b32 v{T+13}, v{T+15}
        s_nop 1
        buffer_store_dwordx4 {vr(T+8)}, v6, s[12:15], s48 offen
        buffer_store_dwordx4 {vr(T+12)}, v6, s[12:15], s48 offen offset:32
        """)
    k.stamp(7, 'f')
    if kv:
        k(f"s_waitcnt lgkmcnt(0)\ns_barrier\ns_cmp_ge_u32 s3, 2\ns_cbranch_scc1 {k.name}_end")
        for q in range(nq): k(f"ds_read_b128 {vr(16+4*q)}, v14 offset:{3*SLOT+1024*q}")
        k("s_waitcnt lgkmcnt(0)")
        for i in range(4*nq): k(f"v_add_f32 v{32+i}, v{32+i}, v{16+i}")
    if kv == 'k':
        for i in range(4): k(f"v_mul_f32 v{32+i}, v{32+i}, v11")
        k(f"""
        v_cvt_pk_bf16_f32 v{T+8}, v32, v33
        v_cvt_pk_bf16_f32 v{T+9}, v34, v35
        v_mul_f32 v12, v32, v32
        v_fma_f32 v12, v33, v33, v12
        v_fma_f32 v12, v34, v34, v12
        v_fma_f32 v12, v35, v35, v12
        v_lshlrev_b32 v6, 4, v5
        s_lshl_b32 s45, s16, 10
        s_and_b32 s46, s38, 1
        s_lshl_b32 s46, s46, 9
        s_add_u32 s45, s45, s46
        s_lshr_b32 s46, s38, 1
        s_lshl_b32 s46, s46, 3
        s_add_u32 s45, s45, s46
        s_add_u32 s45, s45, {KP}
        buffer_store_dwordx2 {vr(T+8,2)}, v6, s[4:7], s45 offen
        """)
        dpp_max(k, 12, 30, 31)
        k(f"""
        v_mov_b32 v13, s30
        v_mov_b32 v6, 0
        s_lshl_b32 s45, s16, 4
        s_lshl_b32 s46, s38, 2
        s_add_u32 s45, s45, s46
        s_add_u32 s45, s45, {KMAX}
        buffer_store_dword v13, v6, s[4:7], s45 offen
        """)
    if kv == 'v':
        for i in range(16): k(f"v_mul_f32 v{32+i}, v{32+i}, v{48+i}")
        for p in range(8): k(f"v_cvt_pk_bf16_f32 v{T+8+p}, v{32+2*p}, v{33+2*p}")
        k(f"""
        s_lshl_b32 s46, s38, 2
        s_sub_u32 s46, s46, 16
        v_and_b32 v6, 3, v5
        v_add_u32 v6, s46, v6
        v_bfe_u32 v7, v5, 2, 1
        v_lshl_add_u32 v6, v7, 4, v6
        v_and_b32 v7, 27, v6
        v_cmp_eq_u32 vcc, 16, v7
        v_mov_b32 v8, 0x3f803f80
        v_lshlrev_b32 v6, 4, v6
        v_lshl_add_u32 v6, v4, 9, v6
        v_cndmask_b32 v8, 0, v8, vcc
        v_cmp_gt_u32 vcc, 4, v5
        s_lshl_b32 s45, s16, 11
        s_add_u32 s45, s45, {VP}
        s_nop 0
        """)
        for p in range(8): k(f"v_cndmask_b32 v{T+8+p}, v8, v{T+8+p}, vcc")
        k(f"""
        v_cmp_gt_u32 vcc, 8, v5
        s_and_saveexec_b64 s[30:31], vcc
        buffer_store_dwordx4 {vr(T+8)}, v6, s[4:7], s45 offen
        buffer_store_dwordx4 {vr(T+12)}, v6, s[4:7], s45 offen offset:1024
        """)
```
